```python
import torch

def _softmax(x, axis=-1):
    return torch.softmax(x, dim=axis)

def _gelu(x):
    return torch.nn.functional.gelu(x, approximate='tanh')

def _silu(x):
    return torch.nn.functional.silu(x)

def _sigmoid(x):
    return torch.sigmoid(x)

def _layernorm(x, axis=-1, eps=1e-05):
    m = x.mean(dim=axis, keepdim=True)
    v = x.var(dim=axis, keepdim=True, unbiased=False)
    return (x - m) / torch.sqrt(v + eps)

def _scatter_add(tgt, idx, src, axis=0):
    return tgt.clone().index_add_(axis, idx, src)

def _segment_sum(src, seg, n):
    out = torch.zeros((n,) + src.shape[1:], dtype=src.dtype)
    return out.index_add_(0, seg, src)

def _pad(x, pw):
    flat = tuple((v for pair in reversed(pw) for v in pair))
    return torch.nn.functional.pad(x, flat)
kernel_name = 'adaLN_cond__memory_aug_recurrent_mem_tr__mixer_token_mlp__prompt'

def setup_inputs():

    _w = lambda a: (lambda t: t.to(torch.bfloat16) if t.is_floating_point() else t)(torch.as_tensor(a))

    def _A_setup():
        B, S, Dm = (1, 2048, 640)
        H, Dh = (32, 128)
        M, seg = (8, 32)
        seg = min(seg, S)
        S = S // seg * seg
        return {'x': _w((lambda *s: torch.randn(*s, dtype=torch.bfloat16) * 0.05)(B, S, Dm)), 'mem0': _w((lambda *s: torch.randn(*s, dtype=torch.bfloat16) * 0.8)(B, M, Dm)), 'Wq': _w((lambda *s: torch.randn(*s, dtype=torch.bfloat16) * 1.6)(Dm, H, Dh) * Dm ** (-0.5)), 'Wk': _w((lambda *s: torch.randn(*s, dtype=torch.bfloat16) * 1.6)(Dm, H, Dh) * Dm ** (-0.5)), 'Wv': _w((lambda *s: torch.randn(*s, dtype=torch.bfloat16) * 0.8)(Dm, H, Dh) * Dm ** (-0.5)), 'Wo': _w((lambda *s: torch.randn(*s, dtype=torch.bfloat16) * 0.8)(H, Dh, Dm) * (H * Dh) ** (-0.5)), 'seg_len': seg}
    _A_in = _A_setup()

    def _B_setup():
        B, S, D, F = (1, 2048, 640, 1728)
        return {'x': _w((lambda *s: torch.randn(*s, dtype=torch.bfloat16) * 0.05)(B, S, D)), 'w1': _w((lambda *s: torch.randn(*s, dtype=torch.bfloat16) * 1.6)(S, F) * S ** (-0.5)), 'b1': _w((lambda *s: torch.randn(*s, dtype=torch.bfloat16) * 1.6)(F) * 0.02), 'w2': _w((lambda *s: torch.randn(*s, dtype=torch.bfloat16) * 0.2)(F, S) * F ** (-0.5)), 'b2': _w((lambda *s: torch.randn(*s, dtype=torch.bfloat16) * 0.2)(S) * 0.02)}
    _B_in = _B_setup()
    return {'A_x': _A_in['x'], 'A_mem0': _A_in['mem0'], 'A_Wq': _A_in['Wq'], 'A_Wk': _A_in['Wk'], 'A_Wv': _A_in['Wv'], 'A_Wo': _A_in['Wo'], 'A_seg_len': _A_in['seg_len'], 'B_x': _B_in['x'], 'B_w1': _B_in['w1'], 'B_b1': _B_in['b1'], 'B_w2': _B_in['w2'], 'B_b2': _B_in['b2'], 'c': _w((lambda *s: torch.randn(*s, dtype=torch.bfloat16) * 0.05)(1, 640) * 8.0), 'w_mod': _w((lambda *s: torch.randn(*s, dtype=torch.bfloat16) * 0.05)(640, 6 * 640) * 640 ** (-0.5) * 8.0)}

def reference(A_x, A_mem0, A_Wq, A_Wk, A_Wv, A_Wo, A_seg_len, B_x, B_w1, B_b1, B_w2, B_b2, c, w_mod):

    def _A_ref(x, mem0, Wq, Wk, Wv, Wo, seg_len):
        B, S, Dm = x.shape
        H, Dh = (Wq.shape[1], Wq.shape[2])
        M = mem0.shape[1]
        scale = Dh ** (-0.5)
        n_seg = S // seg_len
        L = M + seg_len
        idx = torch.arange(L)
        mask = (idx[:, None] < M) | (idx[:, None] >= idx[None, :])
        mem = mem0
        outs = []
        for s in range(n_seg):
            xs = x[:, s * seg_len:(s + 1) * seg_len, :].clone()
            h = torch.concatenate([mem, xs], axis=1)
            q = torch.einsum('btd,dhe->bhte', h, Wq)
            k = torch.einsum('btd,dhe->bhte', h, Wk)
            v = torch.einsum('btd,dhe->bhte', h, Wv)
            scores = torch.einsum('bhqe,bhke->bhqk', q, k) * scale
            scores = torch.where(mask[None, None], scores, -1000000000.0)
            p = _softmax(scores, axis=-1)
            o = torch.einsum('bhqk,bhke->bhqe', p, v)
            o = torch.einsum('bhte,hed->btd', o, Wo)
            mem = o[:, :M, :].clone()
            outs.append(o[:, M:, :])
        return torch.concatenate(outs, axis=1)

    def _B_ref(x, w1, b1, w2, b2):
        B, S, D = x.shape
        h = _layernorm(x, axis=-1)
        u = torch.einsum('bsd,sf->bdf', h, w1) + b1
        u = _gelu(u)
        y = torch.einsum('bdf,fs->bds', u, w2) + b2
        return (lambda x, *d: x.permute(*d))(y, 0, 2, 1)
    x = A_x
    mod = (_silu(c) @ w_mod).reshape(c.shape[0], 6, 1, -1)
    sa, ca, ga, sb, cb, gb = (mod[:, 0].clone(), mod[:, 1].clone(), mod[:, 2].clone(), mod[:, 3].clone(), mod[:, 4].clone(), mod[:, 5].clone())
    h = _layernorm(x, axis=-1) * (1 + ca) + sa
    x = x + ga * _A_ref(h, A_mem0, A_Wq, A_Wk, A_Wv, A_Wo, A_seg_len)
    h = _layernorm(x, axis=-1) * (1 + cb) + sb
    x = x + gb * _B_ref(h, B_w1, B_b1, B_w2, B_b2)
    return x
```

```python
import re

_REG = re.compile(r'^(-|\|)?(abs\()?([vas])(?:(\d+)|\[(\d+):(\d+)\])\)?\|?$')

def v(i, n=1):
    return f"v{i}" if n == 1 else f"v[{i}:{i+n-1}]"
def a(i, n=1):
    return f"a{i}" if n == 1 else f"a[{i}:{i+n-1}]"
def s(i, n=1):
    return f"s{i}" if n == 1 else f"s[{i}:{i+n-1}]"

def regs_of(op):
    op = op.strip()
    if op in ('vcc', 'vcc_lo', 'vcc_hi'):
        return {('c', 0)}
    if op == 'exec':
        return {('e', 0)}
    if op == 'm0':
        return {('m', 0)}
    m = _REG.match(op)
    if not m:
        return set()
    k = m.group(3)
    if m.group(4) is not None:
        return {(k, int(m.group(4)))}
    return {(k, i) for i in range(int(m.group(5)), int(m.group(6)) + 1)}

TRANS = ('v_exp_f32', 'v_log_f32', 'v_rcp_f32', 'v_rsq_f32', 'v_sqrt_f32', 'v_sin_f32', 'v_cos_f32', 'v_rcp_iflag_f32')

def mfma_passes(mn):
    if '32x32' in mn:
        return 8
    return 4

class Ins:
    __slots__ = ('text', 'mn', 'kind', 'w', 'r', 'srcc', 'dpp', 'sg_r')
    def __init__(self, text):
        self.text = text
        t = text.split(';')[0].strip()
        self.kind = 'other'; self.w = set(); self.r = set(); self.srcc = set(); self.dpp = False; self.sg_r = set()
        if not t or t.endswith(':') or t.startswith('.'):
            self.mn = ''; self.kind = 'label' if t.endswith(':') else 'none'
            return
        parts = t.split(None, 1)
        mn = self.mn = parts[0]
        rest = parts[1] if len(parts) > 1 else ''
        ops = []; depth = 0; cur = ''
        for ch in rest:
            if ch == '[': depth += 1
            if ch == ']': depth -= 1
            if ch == ',' and depth == 0:
                ops.append(cur.strip()); cur = ''
            else:
                cur += ch
        if cur.strip():
            ops.append(cur.strip())
        mods = ''
        for i, o in enumerate(ops):
            tk = o.split()
            if len(tk) > 1:
                mods += ' ' + ' '.join(tk[1:])
                ops[i] = tk[0]
        R = [regs_of(o) for o in ops]
        allr = set().union(*R) if R else set()
        base = mn.replace('_e32', '').replace('_e64', '').replace('_dpp', '').replace('_sdwa', '')
        if mn.startswith('v_mfma'):
            self.kind = 'mfma'; self.w = R[0]; self.r = R[1] | R[2] | R[3]; self.srcc = R[3]
        elif mn.startswith('v_smfmac'):
            self.kind = 'mfma'; self.w = R[0]; self.r = allr; self.srcc = R[0]
        elif mn.startswith('v_cmpx'):
            self.kind = 'valu'; self.w = R[0] | {('e', 0)}; self.r = set().union(*R[1:])
        elif mn.startswith('v_cmp'):
            self.kind = 'valu'; self.w = R[0]; self.r = set().union(*R[1:])
        elif mn.startswith('v_permlane') and 'swap' in mn:
            self.kind = 'perm'; self.w = R[0] | R[1]; self.r = R[0] | R[1]
        elif mn.startswith('v_readlane') or mn.startswith('v_readfirstlane'):
            self.kind = 'rdlane'; self.w = R[0]; self.r = set().union(*R[1:])
        elif mn.startswith('v_'):
            self.kind = 'trans' if base in TRANS else 'valu'
            self.w = set(R[0]); self.r = set().union(*R[1:]) if len(R) > 1 else set()
            if base in ('v_add_co_u32', 'v_sub_co_u32', 'v_addc_co_u32', 'v_subb_co_u32', 'v_subrev_co_u32', 'v_div_scale_f32'):
                self.w |= R[1]; self.r = set().union(*R[2:])
            if base in ('v_fmac_f32', 'v_pk_fmac_f16', 'v_dot2c_f32_bf16', 'v_writelane_b32', 'v_mac_f32'):
                self.r |= R[0]
            if base == 'v_cndmask_b32' and len(ops) == 3:
                self.r |= {('c', 0)}
            if 'dpp' in mn or any(k in mods for k in ('quad_perm', 'row_sh', 'row_ro', 'row_mirror', 'row_half_mirror', 'row_bcast', 'row_newbcast', 'wave_')):
                self.dpp = True
                self.r |= R[0]
        elif mn.startswith('ds_'):
            self.kind = 'ds'
            if mn.startswith(('ds_read', 'ds_bpermute', 'ds_permute', 'ds_swizzle')) or 'rtn' in mn:
                self.w = R[0]; self.r = set().union(*R[1:]) if len(R) > 1 else set()
            else:
                self.r = allr
        elif mn.startswith(('buffer_', 'global_', 'flat_')):
            self.kind = 'vmem'
            islds = ' lds' in (' ' + mods + ' ') or '_lds_' in mn
            if mn.startswith(('buffer_wbl2', 'buffer_inv')):
                pass
            elif ('load' in mn) and not islds:
                self.w = R[0]; self.r = set().union(*R[1:])
            elif 'atomic' in mn and 'sc0' in mods:
                self.w = R[0]; self.r = allr
            else:
                self.r = allr
                if islds:
                    self.r |= {('m', 0)}
                if 'store' in mn and ('x4' in mn or 'x3' in mn):
                    data = R[0] if mn.startswith('buffer_') else R[1]
                    self.srcc = data
        elif mn.startswith('s_'):
            self.kind = 'salu'
            if mn in ('s_waitcnt', 's_nop', 's_barrier', 's_endpgm', 's_branch', 's_sleep', 's_setprio') or mn.startswith('s_cbranch'):
                pass
            elif mn.startswith('s_cmp') or mn.startswith('s_bitcmp'):
                self.r = allr
            else:
                self.w = R[0] if R else set(); self.r = set().union(*R[1:]) if len(R) > 1 else set()
                if 'saveexec' in mn:
                    self.w |= {('e', 0)}
        self.sg_r = {x for x in self.r if x[0] in 'sc'}

def states(ins):
    if ins.kind in ('label', 'none'):
        return 0
    if ins.mn == 's_nop':
        return int(ins.text.split(';')[0].split()[1], 0) + 1
    return 1

def need(prod, cons):
    n = 0
    pk, ck = prod.kind, cons.kind
    valu_p = pk in ('valu', 'trans', 'perm', 'rdlane')
    valu_c = ck in ('valu', 'trans', 'perm', 'rdlane')
    vw = {x for x in prod.w if x[0] in 'va'}
    sw = {x for x in prod.w if x[0] in 'sc'}
    if pk == 'mfma':
        p = mfma_passes(prod.mn)
        far = {4: 8, 8: 12}[p]
        if ck == 'mfma':
            ab = cons.r - cons.srcc
            if vw & ab:
                n = max(n, far)
            if vw & cons.srcc:
                if cons.srcc == prod.w and cons.mn == prod.mn:
                    pass
                else:
                    n = max(n, {4: 6, 8: 10}[p])
            if (vw & cons.w) and not (vw & cons.srcc):
                n = max(n, far)
        elif valu_c or ck in ('ds', 'vmem'):
            if vw & (cons.r | cons.w):
                n = max(n, far)
            if valu_c and (prod.srcc & cons.w):
                n = max(n, {4: 3, 8: 7}[p])
        return n
    if valu_p:
        if ck == 'mfma' and (vw & cons.r):
            n = max(n, 2)
        if ck == 'mfma' and ('e', 0) in prod.w:
            n = max(n, 4)
        if ck == 'perm' and (vw & cons.r):
            n = max(n, 2)
        if valu_c and cons.dpp and (vw & cons.r):
            n = max(n, 2)
        if valu_c and cons.dpp and ('e', 0) in prod.w:
            n = max(n, 5)
        if ck == 'rdlane' and (vw & cons.r):
            n = max(n, 1)
        if ck == 'rdlane' and (sw & cons.r):
            n = max(n, 4)
        if ck in ('rdlane', 'perm') and ('e', 0) in prod.w:
            n = max(n, 4)
        if pk == 'trans' and valu_c and (vw & cons.r):
            n = max(n, 1)
        if valu_c and (sw & cons.sg_r):
            n = max(n, 2)
        if ck == 'vmem' and (sw & cons.sg_r):
            n = max(n, 5)
        if ck == 'salu' and (sw & cons.r):
            n = max(n, 1)
        return n
    if pk == 'salu':
        if ('m', 0) in prod.w and ck == 'vmem' and ('m', 0) in cons.r:
            n = max(n, 1)
        return n
    if pk == 'vmem' and prod.srcc:
        if prod.srcc & cons.w:
            n = max(n, 2 if valu_c else 1)
    return n

WINDOW = 14

class Asm:
    def __init__(self):
        self.lines = []
        self.uid = 0
    def __call__(self, text):
        for ln in text.split('\n'):
            ln = ln.strip()
            if ln:
                self.lines.append(ln)
    def label(self, name):
        self.lines.append(name + ':')
    def newlabel(self, base):
        self.uid += 1
        return f"L_{base}_{self.uid}"
    def comment(self, t):
        self.lines.append('; ' + t)
    def settle(self):
        self.lines.append('s_nop 7'); self.lines.append('s_nop 3')
    def raw(self, text):
        self.lines.append(text)
    def finish(self):
        out = []; hist = []; pads = 0
        for ln in self.lines:
            if ln.startswith(';') or ln.startswith('.') and not ln.endswith(':'):
                out.append(ln); continue
            ins = Ins(ln)
            if ins.kind == 'none':
                out.append(ln); continue
            if ins.kind == 'label':
                out.append(ln); continue
            dist = 0; short = 0
            for p in reversed(hist):
                nd = need(p, ins)
                if nd > dist:
                    short = max(short, nd - dist)
                dist += states(p)
                if dist >= WINDOW:
                    break
            while short > 0:
                k = min(short, 16)
                nop = Ins(f's_nop {k-1}')
                out.append('    ' + nop.text); hist.append(nop); pads += 1
                short -= k
            out.append('    ' + ln); hist.append(ins)
            if len(hist) > 40:
                hist = hist[-30:]
        return '\n'.join(out) + '\n', pads

def interleave(main, fill, per=2, start=0):
    out = []; j = 0
    for i, m in enumerate(main):
        out.append(m)
        if i >= start:
            for _ in range(per):
                if j < len(fill):
                    out.append(fill[j]); j += 1
    out.extend(fill[j:])
    return out
```

```python
from asm import *
from layout import *

LDS_WO = 0
LDS_M = 81920
LDS_Q = 97280
LDS_VM = 101376
LDS_K = 103424
LDS_V = 119808
RAW_WO = 81920
LDS_DUMMY = 131072
RS_SLOT = 0x100000
PG_SLOT = 0x20000
AG_SLOT = 0x8000

DBG_TICKET = 0
DBG_OTHER = 8
DBG_INIT = 9

S_WS = 4
S_T0 = 8
S_T1 = 12
S_T2 = 16
S_T3 = 20
S_DBG = 24
S_W, S_X, S_C, S_H, S_HF = 26, 27, 28, 29, 30
S_STEP, S_FAST = 31, 32
S_AGO, S_RSS, S_RSL, S_RSL1, S_PGP = 33, 34, 35, 36, 37
S_KO, S_VO, S_KMO = 38, 39, 40
S_A, S_B, S_C2, S_D = 41, 42, 43, 44
S_SPIN = 45
S_TS = 46
S_TSO = 48
S_ISRED, S_UNIT, S_TAG, S_PAR = 56, 57, 58, 59
S_AGS, S_AGR = 54, 55
S_KB = 49

V_AG, V_LMW, V_LMR, V_IDX, V_QW, V_QR, V_KR, V_VR = 0, 1, 2, 3, 4, 5, 6, 7
V_VMW, V_WOR, V_RSS, V_RSL0, V_RSL2, V_PGP, V_KD0, V_KD1 = 8, 9, 10, 11, 12, 13, 14, 15
V_VD, V_KMS, V_VMS, V_VMR = 16, 17, 18, 19
V_AG2, V_LMW2, V_AGS, V_PGP2 = 20, 21, 22, 23
V_SELR, V_ONE, V_HALF = 24, 28, 32
RA = 34
RB = 74
RC = 94

def wreg(tile, ks):
    idx = tile * 10 + ks
    return a(idx * 8, 8) if idx < 32 else v(112 + (idx - 32) * 8, 8)
def wreg_half(tile, ks, pair):
    idx = tile * 10 + ks
    return a(idx * 8 + pair * 2, 2) if idx < 32 else v(112 + (idx - 32) * 8 + pair * 2, 2)

def srd(A, dst, karg, nbytes, tmp):
    A(f"s_load_dwordx2 {s(dst,2)}, s[0:1], {karg}")

def srd_fin(A, dst, nbytes):
    A(f"s_and_b32 {s(dst+1)}, {s(dst+1)}, 0xffff")
    A(f"s_mov_b32 {s(dst+2)}, {nbytes}")
    A(f"s_mov_b32 {s(dst+3)}, {SRD3:#x}")

NTS = 16
S_TSV = 60

def ts(A, slot, on):
    if not on:
        return
    A("s_waitcnt lgkmcnt(0)")
    A(f"s_memtime {s(S_TS,2)}")
    A("s_waitcnt lgkmcnt(0)")
    A(f"s_mov_b32 {s(S_TSV+slot)}, {s(S_TS)}")

def ts_flush(A, on, tmp):
    if not on:
        return
    A(f"v_mov_b32 {v(tmp+1)}, {s(S_TSO)}")
    for i in range(NTS):
        A(f"v_mov_b32 {v(tmp)}, {s(S_TSV+i)}")
        A(f"buffer_store_dword {v(tmp)}, {v(tmp+1)}, {s(S_WS,4)}, 0 offen offset:{i*4}")
        A("s_nop 0")

class Lds:
    def __init__(self, A):
        self.A = A; self.ops = []
    def op(self, text, tag=None):
        self.A(text); self.ops.append(tag)
    def wait(self, tag):
        idx = max(i for i, t in enumerate(self.ops) if t == tag)
        n = len(self.ops) - 1 - idx
        self.A(f"s_waitcnt lgkmcnt({min(n, 15)})")
        if n <= 15:
            self.ops = [None if i <= idx else t for i, t in enumerate(self.ops)]
    def drain(self):
        self.A("s_waitcnt lgkmcnt(0)"); self.ops = []

def poll(A, loads, regs, fill=None, pre=0):
    W = A.newlabel('pollw'); D = A.newlabel('polled')
    t = RC + 17
    for _ in range(pre):
        A("s_nop 15")
    for ld in loads:
        A(ld)
    A(f"s_mov_b32 {s(S_SPIN)}, 0x100000")
    if fill:
        fill()
    A.label(W)
    A("s_waitcnt vmcnt(0)")
    A(f"v_max3_u32 {v(t)}, {v(regs[0])}, {v(regs[1])}, {v(regs[2])}")
    rest = regs[3:]
    while len(rest) >= 2:
        A(f"v_max3_u32 {v(t)}, {v(t)}, {v(rest[0])}, {v(rest[1])}")
        rest = rest[2:]
    if rest:
        A(f"v_max_u32 {v(t)}, {v(t)}, {v(rest[0])}")
    A(f"v_cmp_eq_u32 vcc, -1, {v(t)}")
    A(f"s_cbranch_vccz {D}")
    for ld in loads:
        A(ld)
    A(f"s_sub_u32 {s(S_SPIN)}, {s(S_SPIN)}, 1")
    A(f"s_cbranch_scc0 {W}")
    A("s_waitcnt vmcnt(0)")
    A.label(D)

def gen_roles(A, exit_label):
    A(f"s_load_dwordx2 {s(S_DBG,2)}, s[0:1], {KA['dbg']}")
    A(f"s_load_dwordx2 {s(S_WS,2)}, s[0:1], {KA['ws']}")
    A(f"s_getreg_b32 {s(S_X)}, hwreg(HW_REG_XCC_ID, 0, 4)")
    A(f"v_lshrrev_b32 v1, 6, v0")
    A(f"v_readfirstlane_b32 {s(S_W)}, v1")
    A(f"s_and_b32 {s(S_X)}, {s(S_X)}, 7")
    A("s_waitcnt lgkmcnt(0)")
    srd_fin(A, S_WS, WS_BYTES)
    Lw = A.newlabel('role_wait'); Lo = A.newlabel('role_other'); Lp = A.newlabel('role_pub'); Lov = A.newlabel('role_over')
    A(f"s_cmp_lg_u32 {s(S_W)}, 0")
    A(f"s_cbranch_scc1 {Lw}")
    A(f"s_lshl_b32 {s(S_A)}, {s(S_X)}, 2")
    A(f"v_mov_b32 v1, {s(S_A)}")
    A("v_mov_b32 v2, 1")
    A("s_mov_b64 exec, 1")
    A(f"global_atomic_add v3, v1, v2, {s(S_DBG,2)} sc0")
    A("s_waitcnt vmcnt(0)")
    A(f"v_readfirstlane_b32 {s(S_A)}, v3")
    A(f"s_cmp_ge_u32 {s(S_X)}, 2")
    A(f"s_cbranch_scc1 {Lo}")
    A(f"s_cmp_ge_u32 {s(S_A)}, 32")
    A(f"s_cbranch_scc1 {Lo}")
    A(f"s_lshl_b32 {s(S_B)}, {s(S_X)}, 5")
    A(f"s_add_u32 {s(S_A)}, {s(S_A)}, {s(S_B)}")
    A(f"s_branch {Lp}")
    A.label(Lo)
    A(f"v_mov_b32 v1, {DBG_OTHER*4}")
    A(f"global_atomic_add v3, v1, v2, {s(S_DBG,2)} sc0")
    A("s_waitcnt vmcnt(0)")
    A(f"v_readfirstlane_b32 {s(S_A)}, v3")
    A(f"s_cmp_ge_u32 {s(S_A)}, 192")
    A(f"s_cbranch_scc1 {Lov}")
    A(f"s_add_u32 {s(S_A)}, {s(S_A)}, 64")
    A(f"s_branch {Lp}")
    A.label(Lov)
    A(f"s_sub_u32 {s(S_D)}, {s(S_A)}, 192")
    wait_all_tickets(A)
    A(f"s_min_u32 {s(S_B)}, {s(S_B)}, 32")
    A(f"s_min_u32 {s(S_C2)}, {s(S_C2)}, 32")
    A(f"s_add_u32 {s(S_A)}, {s(S_B)}, {s(S_D)}")
    A(f"s_cmp_lt_u32 {s(S_A)}, 32")
    A(f"s_cbranch_scc1 {Lp}")
    A(f"s_add_u32 {s(S_A)}, {s(S_A)}, {s(S_C2)}")
    A.label(Lp)
    A("s_mov_b64 exec, -1")
    A(f"v_mov_b32 v1, 163836")
    A(f"v_mov_b32 v2, {s(S_A)}")
    A("ds_write_b32 v1, v2")
    A("s_waitcnt lgkmcnt(0)")
    A.label(Lw)
    A("s_barrier")
    A(f"v_mov_b32 v1, 163836")
    A("ds_read_b32 v2, v1")
    A("s_waitcnt lgkmcnt(0)")
    A(f"v_readfirstlane_b32 {s(S_A)}, v2")
    A("s_barrier")
    A(f"s_cmp_ge_u32 {s(S_A)}, 64")
    A(f"s_cbranch_scc1 {exit_label}")
    A(f"s_lshr_b32 {s(S_X)}, {s(S_A)}, 5")
    A(f"s_and_b32 {s(S_C)}, {s(S_A)}, 31")

def wait_all_tickets(A, b=2):
    L = A.newlabel('tick'); D = A.newlabel('tickd')
    A(f"s_mov_b32 {s(S_SPIN)}, 0x100000")
    A(f"v_mov_b32 {v(b+9)}, 0")
    A.label(L)
    A(f"global_load_dwordx4 {v(b,4)}, {v(b+9)}, {s(S_DBG,2)} sc1")
    A(f"global_load_dwordx4 {v(b+4,4)}, {v(b+9)}, {s(S_DBG,2)} offset:16 sc1")
    A("s_waitcnt vmcnt(0)")
    A(f"v_add3_u32 {v(b+8)}, {v(b)}, {v(b+1)}, {v(b+2)}")
    A(f"v_add3_u32 {v(b+8)}, {v(b+8)}, {v(b+3)}, {v(b+4)}")
    A(f"v_add3_u32 {v(b+8)}, {v(b+8)}, {v(b+5)}, {v(b+6)}")
    A(f"v_add_u32 {v(b+8)}, {v(b+8)}, {v(b+7)}")
    A(f"v_readfirstlane_b32 {s(S_B)}, {v(b+8)}")
    A(f"s_cmp_ge_u32 {s(S_B)}, 256")
    A(f"s_cbranch_scc1 {D}")
    A("s_sleep 4")
    A(f"s_sub_u32 {s(S_SPIN)}, {s(S_SPIN)}, 1")
    A(f"s_cbranch_scc0 {L}")
    A.label(D)
    A(f"v_readfirstlane_b32 {s(S_B)}, {v(b)}")
    A(f"v_readfirstlane_b32 {s(S_C2)}, {v(b+1)}")

def gen_prologue(A, tson):
    T = RA
    A("v_mov_b32 v110, v0")
    lane, n, g, t0, t1, t2, t3 = T, T+1, T+2, T+3, T+4, T+5, T+6
    A(f"s_lshr_b32 {s(S_H)}, {s(S_C)}, 1")
    A(f"s_lshl_b32 {s(S_A)}, {s(S_X)}, 4")
    A(f"s_add_u32 {s(S_H)}, {s(S_H)}, {s(S_A)}")
    A(f"s_and_b32 {s(S_HF)}, {s(S_C)}, 1")
    for d, k in ((S_T0, 'Wq'), (S_T1, 'Wk'), (S_T2, 'Wv'), (S_T3, 'Wo')):
        A(f"s_load_dwordx2 {s(d,2)}, s[0:1], {KA[k]}")
    A(f"v_and_b32 {v(lane)}, 63, v110")
    A(f"v_and_b32 {v(n)}, 15, {v(lane)}")
    A(f"v_lshrrev_b32 {v(g)}, 4, {v(lane)}")
    for i in range(4):
        A(f"v_mov_b32 {v(RB+i)}, -1")
    A(f"s_lshl_b32 {s(S_D)}, {s(S_X)}, 5")
    A(f"s_add_u32 {s(S_D)}, {s(S_D)}, {s(S_C)}")
    A(f"v_lshlrev_b32 {v(t0)}, 4, {v(lane)}")
    A(f"s_mul_i32 {s(S_A)}, {s(S_C)}, 20480")
    A(f"s_mul_i32 {s(S_B)}, {s(S_W)}, 5120")
    A(f"s_add_u32 {s(S_A)}, {s(S_A)}, {s(S_B)}")
    A(f"s_lshl_b32 {s(S_B)}, {s(S_X)}, 20")
    A(f"s_add_u32 {s(S_A)}, {s(S_A)}, {s(S_B)}")
    A(f"s_add_u32 {s(S_A)}, {s(S_A)}, {WS_RS}")
    for i in range(5):
        A(f"buffer_store_dwordx4 {v(RB,4)}, {v(t0)}, {s(S_WS,4)}, {s(S_A)} offen sc1")
        A(f"s_add_u32 {s(S_A)}, {s(S_A)}, 1024")
    A(f"s_lshl_b32 {s(S_A)}, {s(S_D)}, 12")
    A(f"s_lshl_b32 {s(S_B)}, {s(S_W)}, 10")
    A(f"s_add_u32 {s(S_A)}, {s(S_A)}, {s(S_B)}")
    A(f"s_add_u32 {s(S_A)}, {s(S_A)}, {WS_PG}")
    A(f"buffer_store_dwordx4 {v(RB,4)}, {v(t0)}, {s(S_WS,4)}, {s(S_A)} offen sc1")
    A(f"s_lshl_b32 {s(S_A)}, {s(S_D)}, 10")
    A(f"s_lshl_b32 {s(S_B)}, {s(S_W)}, 8")
    A(f"s_add_u32 {s(S_A)}, {s(S_A)}, {s(S_B)}")
    A(f"s_add_u32 {s(S_A)}, {s(S_A)}, {WS_AGB}")
    A(f"v_mov_b32 {v(t1)}, {INVALID:#x}")
    A(f"v_cmp_gt_u32 vcc, 16, {v(lane)}")
    A(f"v_cndmask_b32 {v(t1)}, {v(t1)}, {v(t0)}, vcc")
    A(f"buffer_store_dwordx4 {v(RB,4)}, {v(t1)}, {s(S_WS,4)}, {s(S_A)} offen sc1")
    A("s_waitcnt lgkmcnt(0)")
    for d in (S_T0, S_T1, S_T2, S_T3):
        srd_fin(A, d, 640 * 4096 * 2)
    A(f"s_lshl_b32 {s(S_A)}, {s(S_H)}, 1")
    A(f"s_add_u32 {s(S_A)}, {s(S_A)}, {s(S_HF)}")
    A(f"s_mul_i32 {s(S_A)}, {s(S_A)}, 81920")
    A(f"s_mul_i32 {s(S_B)}, {s(S_W)}, 20480")
    A(f"s_add_u32 {s(S_A)}, {s(S_A)}, {s(S_B)}")
    A(f"s_add_u32 {s(S_B)}, {s(S_B)}, {RAW_WO}")
    for i in range(20):
        A(f"s_mov_b32 m0, {s(S_B)}")
        A(f"s_add_u32 {s(S_B)}, {s(S_B)}, 1024")
        A(f"buffer_load_dwordx4 {v(t0)}, {s(S_T3,4)}, {s(S_A)} offen lds")
        A(f"s_add_u32 {s(S_A)}, {s(S_A)}, 1024")
    QD0, QD1, VD0, VD1, QR0, QR1, VR0 = T+8, T+9, T+10, T+11, T+12, T+13, T+14
    A(f"v_lshlrev_b32 {v(t1)}, 1, {v(g)}")
    A(f"v_xor_b32 {v(t2)}, {v(n)}, {v(t1)}")
    A(f"v_lshlrev_b32 {v(t2)}, 4, {v(t2)}")
    A(f"v_lshl_add_u32 {v(QD0)}, {v(g)}, 13, {v(t2)}")
    A(f"v_xor_b32 {v(QD1)}, 128, {v(QD0)}")
    A(f"s_lshl_b32 {s(S_A)}, {s(S_H)}, 8")
    A(f"s_lshl_b32 {s(S_B)}, {s(S_W)}, 17")
    A(f"s_add_u32 {s(S_A)}, {s(S_A)}, {s(S_B)}")
    A(f"v_add_u32 {v(QD0)}, {s(S_A)}, {v(QD0)}")
    A(f"v_add_u32 {v(QD1)}, {s(S_A)}, {v(QD1)}")
    A(f"v_and_b32 {v(t1)}, 7, {v(lane)}")
    A(f"v_and_b32 {v(t2)}, 1, {v(g)}")
    A(f"v_lshlrev_b32 {v(t2)}, 1, {v(t2)}")
    A(f"v_xor_b32 {v(t1)}, {v(t1)}, {v(t2)}")
    A(f"v_lshlrev_b32 {v(t1)}, 4, {v(t1)}")
    A(f"v_lshrrev_b32 {v(t2)}, 3, {v(lane)}")
    A(f"v_lshl_add_u32 {v(VD0)}, {v(t2)}, 13, {v(t1)}")
    A(f"v_xor_b32 {v(VD1)}, 64, {v(VD0)}")
    A(f"s_lshl_b32 {s(S_B)}, {s(S_HF)}, 7")
    A(f"s_add_u32 {s(S_A)}, {s(S_A)}, {s(S_B)}")
    A(f"v_add_u32 {v(VD0)}, {s(S_A)}, {v(VD0)}")
    A(f"v_add_u32 {v(VD1)}, {s(S_A)}, {v(VD1)}")
    rr, cc = T+15, T+16
    A(f"v_lshrrev_b32 {v(rr)}, 2, {v(n)}")
    A(f"v_and_b32 {v(cc)}, 3, {v(n)}")
    A(f"v_and_b32 {v(t1)}, 1, {v(g)}")
    A(f"v_lshl_add_u32 {v(t1)}, {v(t1)}, 2, {v(rr)}")
    A(f"v_lshlrev_b32 {v(t1)}, 1, {v(t1)}")
    A(f"v_lshrrev_b32 {v(t2)}, 1, {v(cc)}")
    A(f"v_xor_b32 {v(t1)}, {v(t1)}, {v(t2)}")
    A(f"v_lshlrev_b32 {v(t1)}, 4, {v(t1)}")
    A(f"v_and_b32 {v(t2)}, 1, {v(cc)}")
    A(f"v_lshl_add_u32 {v(t1)}, {v(t2)}, 3, {v(t1)}")
    A(f"v_lshl_add_u32 {v(t2)}, {v(g)}, 3, {v(rr)}")
    A(f"v_lshl_add_u32 {v(t1)}, {v(t2)}, 8, {v(t1)}")
    A(f"s_lshl_b32 {s(S_A)}, {s(S_W)}, 6")
    A(f"v_xor_b32 {v(QR0)}, {s(S_A)}, {v(t1)}")
    A(f"v_xor_b32 {v(QR1)}, 32, {v(QR0)}")
    A(f"v_and_b32 {v(t1)}, 1, {v(g)}")
    A(f"v_lshlrev_b32 {v(t1)}, 1, {v(t1)}")
    A(f"v_lshrrev_b32 {v(t3)}, 1, {v(rr)}")
    A(f"v_add_u32 {v(t1)}, {v(t1)}, {v(t3)}")
    A(f"v_lshlrev_b32 {v(t1)}, 1, {v(t1)}")
    A(f"v_lshrrev_b32 {v(t3)}, 1, {v(cc)}")
    A(f"v_xor_b32 {v(t1)}, {v(t1)}, {v(t3)}")
    A(f"v_lshlrev_b32 {v(t1)}, 4, {v(t1)}")
    A(f"v_and_b32 {v(t3)}, 1, {v(cc)}")
    A(f"v_lshl_add_u32 {v(t1)}, {v(t3)}, 3, {v(t1)}")
    A(f"v_lshl_add_u32 {v(t1)}, {v(t2)}, 7, {v(t1)}")
    A(f"s_lshl_b32 {s(S_A)}, {s(S_W)}, 5")
    A(f"v_xor_b32 {v(VR0)}, {s(S_A)}, {v(t1)}")
    A(f"v_add_u32 {v(VR0)}, 32768, {v(VR0)}")

    def issue_stage(ks):
        sb = (ks & 1) * 40960
        A(f"s_lshl_b32 {s(S_B)}, {s(S_W)}, 12")
        for mat, (sr, off) in enumerate(((S_T0, 0), (S_T1, 16384))):
            for ii in range(4):
                A(f"s_add_u32 m0, {s(S_B)}, {sb + off + ii*1024}")
                A(f"s_mov_b32 {s(S_A)}, {(ks*64 + 4*ii) * 8192}")
                A(f"buffer_load_dwordx4 {v(QD0 if ii < 2 else QD1)}, {s(sr,4)}, {s(S_A)} offen lds")
        A(f"s_lshl_b32 {s(S_B)}, {s(S_W)}, 11")
        for i in range(2):
            A(f"s_add_u32 m0, {s(S_B)}, {sb + 32768 + i*1024}")
            A(f"s_mov_b32 {s(S_A)}, {(ks*64 + 8*i) * 8192}")
            A(f"buffer_load_dwordx4 {v(VD0 if i == 0 else VD1)}, {s(S_T2,4)}, {s(S_A)} offen lds")
    issue_stage(0)
    issue_stage(1)
    ad0, ad1, ad2 = T+17, T+18, T+19
    for ks in range(10):
        sb = (ks & 1) * 40960
        A(f"s_waitcnt vmcnt({10 if ks < 9 else 0})")
        A("s_barrier")
        if ks == 0:
            La = A.newlabel('arr')
            A(f"s_cmp_lg_u32 {s(S_W)}, 0")
            A(f"s_cbranch_scc1 {La}")
            A(f"v_mov_b32 {v(t1)}, {DBG_INIT*4}")
            A(f"v_mov_b32 {v(t2)}, 1")
            A("s_mov_b64 exec, 1")
            A(f"global_atomic_add {v(t1)}, {v(t2)}, {s(S_DBG,2)}")
            A("s_mov_b64 exec, -1")
            A.label(La)
        A(f"v_add_u32 {v(ad0)}, {sb}, {v(QR0)}")
        A(f"v_add_u32 {v(ad1)}, {sb}, {v(QR1)}")
        A(f"v_add_u32 {v(ad2)}, {sb}, {v(VR0)}")
        for mat in range(2):
            for tt in range(2):
                tile = mat * 2 + tt
                for hb in range(2):
                    for q in range(2):
                        A(f"ds_read_b64_tr_b16 {wreg_half(tile, ks, hb*2+q)}, {v(ad0 if tt == 0 else ad1)} offset:{mat*16384 + hb*8192 + q*1024}")
        for hb in range(2):
            for q in range(2):
                A(f"ds_read_b64_tr_b16 {wreg_half(4, ks, hb*2+q)}, {v(ad2)} offset:{hb*4096 + q*512}")
        A("s_waitcnt lgkmcnt(0)")
        if ks + 2 < 10:
            A("s_barrier")
            issue_stage(ks + 2)
    A("s_barrier")
    A(f"v_lshl_add_u32 {v(t1)}, {v(g)}, 2, {v(rr)}")
    A(f"s_movk_i32 {s(S_A)}, 1280")
    A(f"v_mul_lo_u32 {v(t1)}, {v(t1)}, {s(S_A)}")
    A(f"v_lshl_add_u32 {v(t1)}, {v(cc)}, 3, {v(t1)}")
    A(f"s_mul_i32 {s(S_A)}, {s(S_W)}, 320")
    A(f"s_add_u32 {s(S_A)}, {s(S_A)}, {RAW_WO}")
    A(f"v_add_u32 {v(t1)}, {s(S_A)}, {v(t1)}")
    A(f"s_mul_i32 {s(S_A)}, {s(S_W)}, 20480")
    A(f"v_lshlrev_b32 {v(V_WOR)}, 4, {v(lane)}")
    A(f"v_add_u32 {v(V_WOR)}, {s(S_A)}, {v(V_WOR)}")
    A(f"v_add_u32 {v(t2)}, {32*1280}, {v(t1)}")
    buf = RB
    for tt in range(10):
        for kk in range(2):
            ad = t1 if kk == 0 else t2
            b = buf + kk * 4
            A(f"ds_read_b64_tr_b16 {v(b,2)}, {v(ad)} offset:{tt*32}")
            A(f"ds_read_b64_tr_b16 {v(b+2,2)}, {v(ad)} offset:{tt*32 + 16*1280}")
        A("s_waitcnt lgkmcnt(0)")
        for kk in range(2):
            A(f"ds_write_b128 {v(V_WOR)}, {v(buf+kk*4,4)} offset:{tt*2048 + kk*1024}")
        A("s_waitcnt lgkmcnt(0)")
    A("s_barrier")
    g1, g2 = T+20, T+21
    A(f"v_and_b32 {v(g1)}, 1, {v(g)}")
    A(f"v_lshrrev_b32 {v(g2)}, 1, {v(g)}")
    A(f"s_mul_i32 {s(S_A)}, {s(S_W)}, 160")
    A(f"v_lshl_add_u32 {v(t1)}, {v(g)}, 4, {v(n)}")
    A(f"v_add_u32 {v(t1)}, {s(S_A)}, {v(t1)}")
    A(f"v_lshrrev_b32 {v(t2)}, 3, {v(t1)}")
    A(f"v_lshlrev_b32 {v(t2)}, 12, {v(t2)}")
    A(f"v_and_b32 {v(t3)}, 7, {v(t1)}")
    A(f"v_lshl_add_u32 {v(t2)}, {v(t3)}, 4, {v(t2)}")
    A(f"s_lshl_b32 {s(S_B)}, {s(S_C)}, 7")
    A(f"v_add_u32 {v(t2)}, {s(S_B)}, {v(t2)}")
    A(f"v_mov_b32 {v(T+22)}, {INVALID:#x}")
    A(f"v_cmp_gt_u32 vcc, 2, {v(g)}")
    A(f"v_cndmask_b32 {v(V_RSS)}, {v(T+22)}, {v(t2)}, vcc")
    A(f"v_add_u32 {v(t1)}, {s(S_A)}, {v(lane)}")
    A(f"v_lshlrev_b32 {v(V_AG)}, 4, {v(t1)}")
    A(f"v_mov_b32 {v(T+22)}, {INVALID:#x}")
    A(f"v_cmp_gt_u32 vcc, 32, {v(lane)}")
    A(f"v_cndmask_b32 {v(V_AG2)}, {v(T+22)}, {v(V_AG)}, vcc")
    A(f"s_mul_i32 {s(S_A)}, {s(S_W)}, 3840")
    A(f"s_add_u32 {s(S_A)}, {s(S_A)}, {LDS_M}")
    A(f"s_movk_i32 {s(S_B)}, 384")
    A(f"v_mul_lo_u32 {v(t3)}, {v(g)}, {s(S_B)}")
    A(f"v_lshl_add_u32 {v(t3)}, {v(n)}, 4, {v(t3)}")
    A(f"v_add_u32 {v(V_LMW)}, {s(S_A)}, {v(t3)}")
    A(f"v_lshlrev_b32 {v(t3)}, 4, {v(lane)}")
    A(f"v_add_u32 {v(t3)}, {LDS_DUMMY - 3072}, {v(t3)}")
    A(f"v_cndmask_b32 {v(V_LMW2)}, {v(t3)}, {v(V_LMW)}, vcc")
    A(f"v_mul_lo_u32 {v(t3)}, {v(g)}, {s(S_B)}")
    A(f"v_lshrrev_b32 {v(t2)}, 1, {v(rr)}")
    A(f"v_lshl_add_u32 {v(t3)}, {v(t2)}, 6, {v(t3)}")
    A(f"v_lshrrev_b32 {v(t2)}, 1, {v(cc)}")
    A(f"v_lshl_add_u32 {v(t3)}, {v(t2)}, 5, {v(t3)}")
    A(f"v_and_b32 {v(t2)}, 1, {v(rr)}")
    A(f"v_lshl_add_u32 {v(t3)}, {v(t2)}, 4, {v(t3)}")
    A(f"v_and_b32 {v(t2)}, 1, {v(cc)}")
    A(f"v_lshl_add_u32 {v(t3)}, {v(t2)}, 3, {v(t3)}")
    A(f"v_add_u32 {v(V_LMR)}, {LDS_M}, {v(t3)}")
    A(f"v_mov_b32 {v(t2)}, 0x4444")
    A(f"v_mov_b32 {v(t3)}, 0xeeee")
    A(f"v_cmp_gt_u32 vcc, 8, {v(n)}")
    A(f"v_cndmask_b32 {v(V_IDX)}, {v(t3)}, {v(t2)}, vcc")
    A(f"s_lshl_b32 {s(S_A)}, {s(S_W)}, 9")
    A(f"s_add_u32 {s(S_A)}, {s(S_A)}, {LDS_Q}")
    A(f"v_lshl_add_u32 {v(t2)}, {v(g2)}, 4, {v(n)}")
    A(f"v_lshlrev_b32 {v(t2)}, 4, {v(t2)}")
    A(f"v_lshl_add_u32 {v(t2)}, {v(g1)}, 3, {v(t2)}")
    A(f"v_add_u32 {v(V_QW)}, {s(S_A)}, {v(t2)}")
    A(f"v_lshl_add_u32 {v(t2)}, {v(g)}, 3, {v(rr)}")
    A(f"v_lshlrev_b32 {v(t2)}, 4, {v(t2)}")
    A(f"v_and_b32 {v(t3)}, 1, {v(cc)}")
    A(f"v_lshl_add_u32 {v(t2)}, {v(t3)}, 3, {v(t2)}")
    A(f"v_add_u32 {v(V_QR)}, {LDS_Q}, {v(t2)}")
    A(f"v_xor_b32 {v(t2)}, {v(g)}, {v(n)}")
    A(f"v_lshlrev_b32 {v(t2)}, 4, {v(t2)}")
    A(f"v_lshl_add_u32 {v(t2)}, {v(n)}, 8, {v(t2)}")
    A(f"v_add_u32 {v(V_KR)}, {LDS_K}, {v(t2)}")
    A(f"v_lshl_add_u32 {v(t2)}, {v(g)}, 2, {v(rr)}")
    A(f"v_and_b32 {v(t3)}, 6, {v(t2)}")
    A(f"v_lshrrev_b32 {v(t1)}, 1, {v(cc)}")
    A(f"v_xor_b32 {v(t3)}, {v(t3)}, {v(t1)}")
    A(f"v_lshlrev_b32 {v(t3)}, 4, {v(t3)}")
    A(f"v_lshl_add_u32 {v(t3)}, {v(t2)}, 7, {v(t3)}")
    A(f"v_and_b32 {v(t1)}, 1, {v(cc)}")
    A(f"v_lshl_add_u32 {v(t3)}, {v(t1)}, 3, {v(t3)}")
    A(f"v_add_u32 {v(V_VR)}, {LDS_V}, {v(t3)}")
    A(f"v_lshlrev_b32 {v(t2)}, 3, {v(lane)}")
    A(f"v_add_u32 {v(V_VMR)}, {LDS_VM}, {v(t2)}")
    A(f"s_lshl_b32 {s(S_A)}, {s(S_W)}, 9")
    A(f"v_add_u32 {v(V_VMW)}, {s(S_A)}, {v(V_VMR)}")
    A(f"s_lshl_b32 {s(S_A)}, {s(S_W)}, 5")
    A(f"s_add_u32 {s(S_UNIT)}, {s(S_A)}, {s(S_C)}")
    A(f"s_cmp_lt_u32 {s(S_UNIT)}, 80")
    A(f"s_cselect_b32 {s(S_ISRED)}, 1, 0")
    A(f"s_min_u32 {s(S_UNIT)}, {s(S_UNIT)}, 79")
    A(f"v_lshrrev_b32 {v(t1)}, 3, {v(n)}")
    A(f"v_lshl_add_u32 {v(t1)}, {v(t1)}, 2, {v(g)}")
    A(f"v_lshlrev_b32 {v(t1)}, 7, {v(t1)}")
    A(f"v_and_b32 {v(t2)}, 7, {v(n)}")
    A(f"v_lshl_add_u32 {v(t1)}, {v(t2)}, 4, {v(t1)}")
    A(f"s_lshl_b32 {s(S_A)}, {s(S_UNIT)}, 12")
    A(f"v_add_u32 {v(V_RSL0)}, {s(S_A)}, {v(t1)}")
    A(f"s_lshr_b32 {s(S_A)}, {s(S_UNIT)}, 5")
    A(f"s_lshl_b32 {s(S_A)}, {s(S_A)}, 14")
    A(f"s_and_b32 {s(S_B)}, {s(S_UNIT)}, 31")
    A(f"s_lshl_b32 {s(S_B)}, {s(S_B)}, 8")
    A(f"s_add_u32 {s(S_A)}, {s(S_A)}, {s(S_B)}")
    A(f"v_lshlrev_b32 {v(t1)}, 7, {v(g)}")
    A(f"v_lshl_add_u32 {v(t1)}, {v(n)}, 4, {v(t1)}")
    A(f"v_add_u32 {v(t1)}, {s(S_A)}, {v(t1)}")
    A(f"v_cmp_gt_u32 vcc, 8, {v(n)}")
    A(f"v_cndmask_b32 {v(t1)}, {v(T+22)}, {v(t1)}, vcc")
    A(f"v_cmp_gt_u32 vcc, 2, {v(g)}")
    A(f"v_cndmask_b32 {v(V_PGP)}, {v(T+22)}, {v(t1)}, vcc")
    A(f"s_lshl_b32 {s(S_A)}, {s(S_UNIT)}, 7")
    A(f"v_lshlrev_b32 {v(t1)}, 4, {v(lane)}")
    A(f"v_add_u32 {v(t1)}, {s(S_A)}, {v(t1)}")
    A(f"v_cmp_gt_u32 vcc, 8, {v(lane)}")
    A(f"v_cndmask_b32 {v(V_AGS)}, {v(T+22)}, {v(t1)}, vcc")
    A(f"s_lshl_b32 {s(S_A)}, {s(S_W)}, 3")
    for ii, dst in ((0, V_KD0), (1, V_KD1)):
        A(f"v_add_u32 {v(t1)}, {s(S_A)}, {v(g)}")
        if ii:
            A(f"v_add_u32 {v(t1)}, 4, {v(t1)}")
        A(f"v_and_b32 {v(t2)}, 15, {v(t1)}")
        A(f"v_xor_b32 {v(t2)}, {v(t2)}, {v(n)}")
        A(f"v_lshlrev_b32 {v(t2)}, 4, {v(t2)}")
        A(f"v_lshl_add_u32 {v(dst)}, {v(t1)}, 13, {v(t2)}")
    A(f"s_lshl_b32 {s(S_B)}, {s(S_H)}, 8")
    A(f"v_add_u32 {v(V_KD0)}, {s(S_B)}, {v(V_KD0)}")
    A(f"v_add_u32 {v(V_KD1)}, {s(S_B)}, {v(V_KD1)}")
    A(f"v_lshrrev_b32 {v(t1)}, 3, {v(lane)}")
    A(f"v_add_u32 {v(t1)}, {s(S_A)}, {v(t1)}")
    A(f"v_and_b32 {v(t2)}, 6, {v(t1)}")
    A(f"v_and_b32 {v(t3)}, 7, {v(lane)}")
    A(f"v_xor_b32 {v(t2)}, {v(t2)}, {v(t3)}")
    A(f"v_lshlrev_b32 {v(t2)}, 4, {v(t2)}")
    A(f"v_lshl_add_u32 {v(V_VD)}, {v(t1)}, 13, {v(t2)}")
    A(f"s_lshl_b32 {s(S_C2)}, {s(S_HF)}, 7")
    A(f"s_add_u32 {s(S_B)}, {s(S_B)}, {s(S_C2)}")
    A(f"v_add_u32 {v(V_VD)}, {s(S_B)}, {v(V_VD)}")
    A(f"s_lshl_b32 {s(S_A)}, {s(S_H)}, 11")
    A(f"s_lshl_b32 {s(S_B)}, {s(S_HF)}, 10")
    A(f"s_add_u32 {s(S_A)}, {s(S_A)}, {s(S_B)}")
    A(f"s_lshl_b32 {s(S_B)}, {s(S_W)}, 8")
    A(f"s_add_u32 {s(S_B)}, {s(S_A)}, {s(S_B)}")
    A(f"v_lshlrev_b32 {v(t1)}, 4, {v(n)}")
    A(f"v_add_u32 {v(t1)}, {s(S_B)}, {v(t1)}")
    A(f"v_mov_b32 {v(T+22)}, {INVALID:#x}")
    A(f"v_cmp_eq_u32 vcc, 0, {v(g)}")
    A(f"v_cndmask_b32 {v(V_KMS)}, {v(T+22)}, {v(t1)}, vcc")
    A(f"s_lshl_b32 {s(S_B)}, {s(S_W)}, 8")
    A(f"s_add_u32 {s(S_A)}, {s(S_A)}, {s(S_B)}")
    A(f"v_lshlrev_b32 {v(t1)}, 4, {v(n)}")
    A(f"v_lshl_add_u32 {v(t1)}, {v(g1)}, 3, {v(t1)}")
    A(f"v_add_u32 {v(t1)}, {s(S_A)}, {v(t1)}")
    A(f"v_cmp_gt_u32 vcc, 2, {v(g)}")
    A(f"v_cndmask_b32 {v(V_VMS)}, {v(T+22)}, {v(t1)}, vcc")
    A(f"v_and_b32 {v(t1)}, 7, {v(n)}")
    A(f"v_lshrrev_b32 {v(t2)}, 1, {v(t1)}")
    A(f"v_and_b32 {v(t3)}, 1, {v(t1)}")
    A(f"v_lshlrev_b32 {v(t3)}, 4, {v(t3)}")
    A(f"v_mov_b32 {v(T+23)}, 0x3f80")
    A(f"v_lshlrev_b32 {v(t3)}, {v(t3)}, {v(T+23)}")
    A(f"v_lshrrev_b32 {v(t1)}, 3, {v(n)}")
    for d in range(4):
        A(f"v_cmp_eq_u32 vcc, {d}, {v(t2)}")
        A(f"v_cndmask_b32 {v(T+24)}, 0, {v(t3)}, vcc")
        A(f"v_cmp_eq_u32 vcc, 0, {v(t1)}")
        A(f"v_cndmask_b32 {v(V_SELR+d)}, 0, {v(T+24)}, vcc")
    for d in range(4):
        A(f"v_mov_b32 {v(V_ONE+d)}, 0x3f803f80")
    for d in range(2):
        A(f"v_mov_b32 {v(V_HALF+d)}, 0x3f003f00")
    A(f"s_load_dwordx2 {s(S_T0,2)}, s[0:1], {KA['mem0']}")
    A("s_waitcnt lgkmcnt(0)")
    srd_fin(A, S_T0, 8 * 640 * 2)
    A(f"v_lshrrev_b32 {v(t1)}, 5, v110")
    A(f"v_and_b32 {v(t2)}, 31, v110")
    A(f"v_mul_u32_u24 {v(t2)}, 20, {v(t2)}")
    A(f"v_mul_u32_u24 {v(t3)}, 1280, {v(t1)}")
    A(f"v_lshl_add_u32 {v(t3)}, {v(t2)}, 1, {v(t3)}")
    for j in range(10):
        A(f"buffer_load_dword {v(RB+j)}, {v(t3)}, {s(S_T0,4)}, 0 offen offset:{j*4}")
    A("s_waitcnt vmcnt(0)")
    for j in range(10):
        for hh in range(2):
            A(f"v_add_u32 {v(T+22)}, {2*j+hh}, {v(t2)}")
            A(f"v_lshrrev_b32 {v(T+23)}, 4, {v(T+22)}")
            A(f"v_lshlrev_b32 {v(T+23)}, 7, {v(T+23)}")
            A(f"v_lshl_add_u32 {v(T+23)}, {v(T+22)}, 4, {v(T+23)}")
            A(f"v_lshl_add_u32 {v(T+23)}, {v(t1)}, 1, {v(T+23)}")
            A(f"v_add_u32 {v(T+23)}, {LDS_M}, {v(T+23)}")
            A(f"{'ds_write_b16' if hh == 0 else 'ds_write_b16_d16_hi'} {v(T+23)}, {v(RB+j)}")
    A(f"s_mov_b32 {s(S_STEP)}, 0")
    A(f"s_mov_b32 {s(S_KB)}, 0")
    A(f"s_mov_b32 {s(S_KO)}, {WS_K}")
    A(f"s_mov_b32 {s(S_VO)}, {WS_V}")
    kv_dma(A, S_KB)
    A(f"s_mul_i32 {s(S_A)}, {s(S_X)}, {80*4096}")
    A(f"s_add_u32 {s(S_RSL)}, {s(S_A)}, {WS_RS}")
    A(f"v_mov_b32 {v(t1)}, {WS_PAR}")
    A(f"buffer_load_dword {v(t2)}, {v(t1)}, {s(S_WS,4)}, 0 offen")
    A("s_waitcnt vmcnt(0)")
    A(f"v_readfirstlane_b32 {s(S_PAR)}, {v(t2)}")
    A(f"s_and_b32 {s(S_PAR)}, {s(S_PAR)}, 1")
    A(f"s_lshl_b32 {s(S_PAR)}, {s(S_PAR)}, 13")
    A(f"s_mul_i32 {s(S_A)}, {s(S_X)}, {3*16384}")
    A(f"s_add_u32 {s(S_PGP)}, {s(S_A)}, {s(S_PAR)}")
    A(f"s_add_u32 {s(S_PGP)}, {s(S_PGP)}, {WS_PG}")
    A(f"s_sub_u32 {s(S_A)}, {3*16384}, {s(S_A)}")
    A(f"s_add_u32 {s(S_AGO)}, {s(S_A)}, {s(S_PAR)}")
    A(f"s_add_u32 {s(S_AGO)}, {s(S_AGO)}, {WS_PG}")
    A(f"s_mul_i32 {s(S_A)}, {s(S_X)}, 10240")
    A(f"s_add_u32 {s(S_AGR)}, {s(S_A)}, {WS_AGB}")
    A(f"s_xor_b32 {s(S_AGS)}, {s(S_AGR)}, {AG_SLOT}")
    wait_all_tickets(A, RB)
    A(f"s_cmp_eq_u32 {s(S_X)}, 0")
    A(f"s_cselect_b32 {s(S_A)}, {s(S_B)}, {s(S_C2)}")
    A(f"s_cmp_ge_u32 {s(S_A)}, 32")
    A(f"s_cselect_b32 {s(S_FAST)}, 1, 0")
    L = A.newlabel('initw'); D = A.newlabel('initd')
    A(f"s_mov_b32 {s(S_SPIN)}, 0x100000")
    A(f"v_mov_b32 {v(t1)}, {DBG_INIT*4}")
    A.label(L)
    A(f"global_load_dword {v(t2)}, {v(t1)}, {s(S_DBG,2)} sc1")
    A("s_waitcnt vmcnt(0)")
    A(f"v_readfirstlane_b32 {s(S_A)}, {v(t2)}")
    A(f"s_cmp_ge_u32 {s(S_A)}, 64")
    A(f"s_cbranch_scc1 {D}")
    A("s_sleep 2")
    A(f"s_sub_u32 {s(S_SPIN)}, {s(S_SPIN)}, 1")
    A(f"s_cbranch_scc0 {L}")
    A.label(D)
    A("s_waitcnt vmcnt(0) lgkmcnt(0)")
    A("s_barrier")

def kv_dma(A, sbuf):
    A(f"s_lshl_b32 {s(S_A)}, {s(S_W)}, 11")
    A(f"s_add_u32 {s(S_A)}, {s(S_A)}, {s(sbuf)}")
    A(f"s_add_u32 m0, {s(S_A)}, {LDS_K}")
    A(f"s_lshl_b32 {s(S_B)}, {s(S_W)}, 10")
    A(f"buffer_load_dwordx4 {v(V_KD0)}, {s(S_WS,4)}, {s(S_KO)} offen sc1 lds")
    A(f"s_add_u32 m0, {s(S_A)}, {LDS_K + 1024}")
    A(f"s_lshr_b32 {s(S_A)}, {s(sbuf)}, 1")
    A(f"buffer_load_dwordx4 {v(V_KD1)}, {s(S_WS,4)}, {s(S_KO)} offen sc1 lds")
    A(f"s_add_u32 {s(S_A)}, {s(S_A)}, {s(S_B)}")
    A(f"s_add_u32 m0, {s(S_A)}, {LDS_V}")
    A(f"s_add_u32 {s(S_KO)}, {s(S_KO)}, {32*8192}")
    A(f"buffer_load_dwordx4 {v(V_VD)}, {s(S_WS,4)}, {s(S_VO)} offen sc1 lds")
    A(f"s_add_u32 {s(S_VO)}, {s(S_VO)}, {32*8192}")


SCALE_LOG2E = 0.08838834764831845 * 1.4426950408889634
S_NEGC, S_POSC = 50, 52

KMH = RC

def kmvm_prepare(A, L):
    t = RB + 4
    A(f"v_and_b32 {v(t)}, 0x7f0, {v(V_KMS)}")
    A(f"v_add_u32 {v(t)}, {LDS_Q + 2048}, {v(t)}")
    L.op(f"ds_read_b128 {v(KMH,4)}, {v(t)}", 'km')
    L.op(f"ds_read_b64 {v(t+4,2)}, {v(V_VMW)}", 'vm0')
    A(f"v_xor_b32 {v(t+1)}, 256, {v(V_VMW)}")
    L.op(f"ds_read_b64 {v(t+6,2)}, {v(t+1)}", 'vm1')
    L.wait('vm1')
    u = t + 8
    for j in range(2):
        A(f"v_lshlrev_b32 {v(u+2*j)}, 16, {v(t+4+j)}")
        A(f"v_and_b32 {v(u+2*j+1)}, 0xffff0000, {v(t+4+j)}")
        A(f"v_lshlrev_b32 {v(u+4)}, 16, {v(t+6+j)}")
        A(f"v_and_b32 {v(u+5)}, 0xffff0000, {v(t+6+j)}")
        A(f"v_add_f32 {v(u+2*j)}, {v(u+2*j)}, {v(u+4)}")
        A(f"v_add_f32 {v(u+2*j+1)}, {v(u+2*j+1)}, {v(u+5)}")
    A(f"v_cvt_pk_bf16_f32 {v(KMH+4)}, {v(u)}, {v(u+1)}")
    A(f"v_cvt_pk_bf16_f32 {v(KMH+5)}, {v(u+2)}, {v(u+3)}")

def kmvm_store(A):
    A(f"buffer_store_dwordx4 {v(KMH,4)}, {v(V_KMS)}, {s(S_WS,4)}, {s(S_KMO)} offen sc1")
    A(f"s_add_u32 {s(S_A)}, {s(S_KMO)}, {WS_VM - WS_KM}")
    A(f"buffer_store_dwordx2 {v(KMH+4,2)}, {v(V_VMS)}, {s(S_WS,4)}, {s(S_A)} offen sc1")

OPT = {}

def cut_tail(A, L, Ltop, exit_label):
    L.drain()
    for d in range(20):
        A(f"v_mov_b32 {v(RB+d)}, 0")
    A(f"s_add_u32 {s(S_STEP)}, {s(S_STEP)}, 1")
    A("s_barrier")
    A(f"s_cmp_lt_u32 {s(S_STEP)}, 1000")
    A(f"s_cbranch_scc1 {Ltop}")
    A("s_waitcnt vmcnt(0)")
    A(f"s_branch {exit_label}")

def gen_loop(A, tson, fast, exit_label, nsteps=64):
    sc = '' if fast else ' sc1'
    L = Lds(A)
    mA = RA
    Dq0, Dq1, Dk0, Dk1, Dv = RB, RB+4, RB+8, RB+12, RB+16
    Kx0, Kx1 = RC, RB
    Ltop = A.newlabel('step'); Llast = A.newlabel('last')
    A.label(Ltop)
    if tson:
        A(f"s_lshl_b32 {s(S_A)}, {s(S_STEP)}, 2")
        A(f"s_add_u32 {s(S_A)}, {s(S_A)}, {s(S_W)}")
        A(f"s_lshl_b32 {s(S_A)}, {s(S_A)}, 6")
        A(f"s_add_u32 {s(S_TSO)}, {s(S_A)}, {WS_TS}")
        A(f"s_or_b32 {s(S_A)}, {s(S_X)}, {s(S_C)}")
        A(f"s_cmp_eq_u32 {s(S_A)}, 0")
        A(f"s_cselect_b32 {s(S_TSO)}, {s(S_TSO)}, {INVALID:#x}")
    ts(A, 0, tson)
    if OPT.get('cut') == 0:
        return cut_tail(A, L, Ltop, exit_label)
    rd = [(f"ds_read_b64_tr_b16 {v(mA+4*ks+2*q,2)}, {v(V_LMR)} offset:{ks*1536 + q*128}", f'm{ks}') for ks in range(10) for q in range(2)]
    for x in rd[:12]:
        L.op(*x)
    if OPT.get('cut') is None or OPT.get('dma'):
        A(f"s_xor_b32 {s(S_C2)}, {s(S_KB)}, 8192")
        kv_dma(A, S_C2)
        if OPT.get('cut') is not None:
            A(f"s_mov_b32 {s(S_KO)}, {WS_K}"); A(f"s_mov_b32 {s(S_VO)}, {WS_V}")
        kmvm_store(A)
    issued = 12
    for ks in range(10):
        L.wait(f'm{ks}')
        A(f"v_smfmac_f32_16x16x64_bf16 {v(Dq0,4)}, {v(mA+4*ks,4)}, {wreg(0,ks)}, {v(V_IDX)}")
        if issued < 20:
            L.op(*rd[issued]); issued += 1
        A(f"v_smfmac_f32_16x16x64_bf16 {v(Dq1,4)}, {v(mA+4*ks,4)}, {wreg(1,ks)}, {v(V_IDX)}")
        if issued < 20:
            L.op(*rd[issued]); issued += 1
    if OPT.get('cut') == 1:
        return cut_tail(A, L, Ltop, exit_label)
    t = RC + 16
    def post(D0, D1, woff, tag):
        o = []
        for r in range(4):
            o.append((f"v_permlane32_swap_b32 {v(D0+r)}, {v(D1+r)}", None))
        for r in range(4):
            o.append((f"v_add_f32 {v(D0+r)}, {v(D0+r)}, {v(D1+r)}", None))
        o.append((f"v_cvt_pk_bf16_f32 {v(D0)}, {v(D0)}, {v(D0+1)}", None))
        o.append((f"v_cvt_pk_bf16_f32 {v(D0+1)}, {v(D0+2)}, {v(D0+3)}", None))
        o.append((f"ds_write_b64 {v(V_QW)}, {v(D0,2)} offset:{woff}", tag))
        return o
    def kx_reads(dst, off, tag):
        o = [(f"v_add_u32 {v(t)}, {s(S_KB)}, {v(V_KR)}", None)]
        for ks in range(4):
            if ks:
                o.append((f"v_xor_b32 {v(t)}, {(ks ^ (ks-1)) << 6}, {v(t)}", None))
            o.append((f"ds_read_b128 {v(dst+4*ks,4)}, {v(t)} offset:{off}", tag))
        return o
    def emit(x):
        if isinstance(x, tuple):
            if x[0].startswith('ds_'):
                L.op(x[0], x[1])
            else:
                A(x[0])
        else:
            A(x)
    km = []
    for ks in range(10):
        km.append(f"v_smfmac_f32_16x16x64_bf16 {v(Dk0,4)}, {v(mA+4*ks,4)}, {wreg(2,ks)}, {v(V_IDX)}")
        km.append(f"v_smfmac_f32_16x16x64_bf16 {v(Dk1,4)}, {v(mA+4*ks,4)}, {wreg(3,ks)}, {v(V_IDX)}")
    for x in interleave(km, kx_reads(Kx0, 0, 'kx0') + post(Dq0, Dq1, 0, 'qw'), per=1, start=0):
        emit(x)
    ts(A, 1, tson)
    if OPT.get('cut') == 2:
        return cut_tail(A, L, Ltop, exit_label)
    vm_ = [f"v_smfmac_f32_16x16x64_bf16 {v(Dv,4)}, {v(mA+4*ks,4)}, {wreg(4,ks)}, {v(V_IDX)}" for ks in range(10)]
    for x in vm_[:4]:
        emit(x)
    for x in interleave(vm_[4:], post(Dk0, Dk1, 2048, 'kw'), per=2):
        emit(x)
    for x in kx_reads(Kx1, 4096, 'kx1'):
        emit(x)
    L.wait('kw')
    A("s_barrier")
    ts(A, 2, tson)
    if OPT.get('cut') == 3:
        return cut_tail(A, L, Ltop, exit_label)
    fq, fk = RA, RA + 16
    Sm, Sx0, Sx1 = RA + 32, RA + 36, RB + 16
    Pv = RC + 16
    for ks in range(4):
        for q in range(2):
            L.op(f"ds_read_b64_tr_b16 {v(fq+4*ks+2*q,2)}, {v(V_QR)} offset:{ks*512 + q*64}", f'fq{ks}')
    A(f"v_cvt_pk_bf16_f32 {v(Pv)}, {v(Dv)}, {v(Dv+1)}")
    A(f"v_cvt_pk_bf16_f32 {v(Pv+1)}, {v(Dv+2)}, {v(Dv+3)}")
    L.op(f"ds_write_b64 {v(V_VMW)}, {v(Pv,2)}", 'vmw')
    fkr = [(f"ds_read_b64_tr_b16 {v(fk+4*ks+2*q,2)}, {v(V_QR)} offset:{2048 + ks*512 + q*64}", f'fk{ks}') for ks in range(4) for q in range(2)]
    for x in fkr[:2]:
        L.op(*x)
    for ks in range(4):
        L.wait(f'fq{ks}')
        A(f"v_mfma_f32_16x16x32_bf16 {v(Sx0,4)}, {v(Kx0+4*ks,4)}, {v(fq+4*ks,4)}, {'0' if ks == 0 else v(Sx0,4)}")
        A(f"v_mfma_f32_16x16x32_bf16 {v(Sx1,4)}, {v(Kx1+4*ks,4)}, {v(fq+4*ks,4)}, {'0' if ks == 0 else v(Sx1,4)}")
        if ks < 3:
            for x in fkr[2+2*ks:4+2*ks]:
                L.op(*x)
    for ks in range(4):
        L.wait(f'fk{ks}')
        A(f"v_mfma_f32_16x16x32_bf16 {v(Sm,4)}, {v(fk+4*ks,4)}, {v(fq+4*ks,4)}, {'0' if ks == 0 else v(Sm,4)}")
    if OPT.get('cut') == 4:
        return cut_tail(A, L, Ltop, exit_label)
    A("s_barrier")
    if OPT.get('cut') is None:
        A(f"s_cmp_eq_u32 {s(S_STEP)}, {nsteps-1}")
        A(f"s_cbranch_scc1 {Llast}")
    Vx, Vm = RA, RA + 16
    A(f"s_lshr_b32 {s(S_A)}, {s(S_KB)}, 1")
    A(f"v_add_u32 {v(t)}, {s(S_A)}, {v(V_VR)}")
    mx, tm = RC + 17, RC + 16
    A(f"v_max3_f32 {v(mx)}, {v(Sx0)}, {v(Sx0+1)}, {v(Sx0+2)}")
    for tt in range(4):
        if tt:
            A(f"v_xor_b32 {v(t)}, {(tt ^ (tt-1)) << 5}, {v(t)}")
        L.op(f"ds_read_b64_tr_b16 {v(Vx+4*tt,2)}, {v(t)}", f'vx{tt}')
        L.op(f"ds_read_b64_tr_b16 {v(Vx+4*tt+2,2)}, {v(t)} offset:2048", f'vx{tt}')
    A(f"v_max3_f32 {v(mx)}, {v(mx)}, {v(Sx0+3)}, {v(Sx1)}")
    A(f"v_max3_f32 {v(mx)}, {v(mx)}, {v(Sx1+1)}, {v(Sx1+2)}")
    A(f"v_max3_f32 {v(mx)}, {v(mx)}, {v(Sx1+3)}, {v(Sm)}")
    A(f"v_max3_f32 {v(mx)}, {v(mx)}, {v(Sm+1)}, {v(Sm+2)}")
    A(f"v_max_f32 {v(mx)}, {v(mx)}, {v(Sm+3)}")
    for tt in range(4):
        L.op(f"ds_read_b64 {v(Vm+2*tt,2)}, {v(V_VMR)} offset:{tt*512}", f'vm{tt}')
    A(f"v_mov_b32 {v(tm)}, {v(mx)}")
    WB = [RC, RC + 8, RA + 24]
    def wo_reads(tt, dst):
        L.op(f"ds_read_b128 {v(dst,4)}, {v(V_WOR)} offset:{tt*2048}", f'wo{tt}')
        L.op(f"ds_read_b128 {v(dst+4,4)}, {v(V_WOR)} offset:{tt*2048 + 1024}", f'wo{tt}')
    wo_reads(0, WB[0])
    A(f"v_permlane32_swap_b32 {v(mx)}, {v(tm)}")
    A(f"v_max_f32 {v(mx)}, {v(mx)}, {v(tm)}")
    A(f"v_mov_b32 {v(tm)}, {v(mx)}")
    wo_reads(1, WB[1])
    A(f"v_permlane16_swap_b32 {v(mx)}, {v(tm)}")
    A(f"v_max_f32 {v(mx)}, {v(mx)}, {v(tm)}")
    A(f"v_mul_f32 {v(mx)}, {s(S_NEGC)}, {v(mx)}")
    Px, Pm = RB, RB + 4
    def exps(S, P):
        for j in range(2):
            A(f"v_pk_fma_f32 {v(S+2*j,2)}, {v(S+2*j,2)}, {s(S_POSC,2)}, {v(tm,2)} op_sel:[0,0,1] op_sel_hi:[1,1,1]")
        for r in range(4):
            A(f"v_exp_f32 {v(S+r)}, {v(S+r)}")
        A(f"v_cvt_pk_bf16_f32 {v(P)}, {v(S)}, {v(S+1)}")
        A(f"v_cvt_pk_bf16_f32 {v(P+1)}, {v(S+2)}, {v(S+3)}")
    exps(Sx0, Px)
    exps(Sx1, Px + 2)
    ts(A, 3, tson)
    if OPT.get('cut') == 5:
        return cut_tail(A, L, Ltop, exit_label)
    oD = [RA + 32, RA + 36, RB + 16, RB + 6]
    den = RB + 10
    for j in range(2):
        A(f"v_pk_fma_f32 {v(Sm+2*j,2)}, {v(Sm+2*j,2)}, {s(S_POSC,2)}, {v(tm,2)} op_sel:[0,0,1] op_sel_hi:[1,1,1]")
    L.wait('vx1')
    A(f"v_mfma_f32_16x16x32_bf16 {v(oD[1],4)}, {v(Vx+4,4)}, {v(Px,4)}, 0")
    A(f"v_exp_f32 {v(Sm)}, {v(Sm)}")
    L.wait('vx2')
    A(f"v_mfma_f32_16x16x32_bf16 {v(oD[2],4)}, {v(Vx+8,4)}, {v(Px,4)}, 0")
    A(f"v_exp_f32 {v(Sm+1)}, {v(Sm+1)}")
    L.wait('vx3')
    A(f"v_mfma_f32_16x16x32_bf16 {v(oD[3],4)}, {v(Vx+12,4)}, {v(Px,4)}, 0")
    A(f"v_exp_f32 {v(Sm+2)}, {v(Sm+2)}")
    A(f"v_mfma_f32_16x16x32_bf16 {v(den,4)}, {v(V_ONE,4)}, {v(Px,4)}, 0")
    A(f"v_exp_f32 {v(Sm+3)}, {v(Sm+3)}")
    A(f"v_cvt_pk_bf16_f32 {v(Pm)}, {v(Sm)}, {v(Sm+1)}")
    A(f"v_cvt_pk_bf16_f32 {v(Pm+1)}, {v(Sm+2)}, {v(Sm+3)}")
    A(f"v_mfma_f32_16x16x32_bf16 {v(oD[0],4)}, {v(Vx,4)}, {v(Px,4)}, 0")
    L.wait('vm3')
    A(f"v_mfma_f32_16x16x16_bf16 {v(den,4)}, {v(V_HALF,2)}, {v(Pm,2)}, {v(den,4)}")
    for tt in (1, 2, 3, 0):
        A(f"v_mfma_f32_16x16x16_bf16 {v(oD[tt],4)}, {v(Vm+2*tt,2)}, {v(Pm,2)}, {v(oD[tt],4)}")
    wo_reads(2, WB[2])
    WB += [RA + 4, RA + 12]
    wo_reads(3, WB[3])
    ts(A, 4, tson)
    if OPT.get('cut') == 6:
        return cut_tail(A, L, Ltop, exit_label)
    A(f"v_rcp_f32 {v(tm)}, {v(den)}")
    Aop = [RB, RA]
    for tt in (1, 2, 3, 0):
        for j in range(2):
            A(f"v_pk_mul_f32 {v(oD[tt]+2*j,2)}, {v(oD[tt]+2*j,2)}, {v(tm,2)} op_sel_hi:[1,0]")
    for tt in range(4):
        dst = Aop[tt >> 1] + 2 * (tt & 1)
        A(f"v_cvt_pk_bf16_f32 {v(dst)}, {v(oD[tt])}, {v(oD[tt]+1)}")
        A(f"v_cvt_pk_bf16_f32 {v(dst+1)}, {v(oD[tt]+2)}, {v(oD[tt]+3)}")
    wo_reads(4, WB[4])
    ts(A, 5, tson)
    if OPT.get('cut') == 7:
        return cut_tail(A, L, Ltop, exit_label)
    DW = [RA + 32, RA + 36, RB + 16, RB + 6, RB + 10, RA + 20]
    def wo_post(T0):
        d0, d1 = DW[T0 % 6], DW[(T0 + 1) % 6]
        return [f"v_cvt_pk_bf16_f32 {v(d0)}, {v(d0)}, {v(d0+1)}",
                f"v_cvt_pk_bf16_f32 {v(d0+1)}, {v(d0+2)}, {v(d0+3)}",
                f"v_cvt_pk_bf16_f32 {v(d0+2)}, {v(d1)}, {v(d1+1)}",
                f"v_cvt_pk_bf16_f32 {v(d0+3)}, {v(d1+2)}, {v(d1+3)}",
                f"s_add_u32 {s(S_A)}, {s(S_RSL)}, {(T0//2)*16384}",
                f"v_permlane16_swap_b32 {v(d0)}, {v(d0+2)}",
                f"v_permlane16_swap_b32 {v(d0+1)}, {v(d0+3)}",
                f"buffer_store_dwordx4 {v(d0,4)}, {v(V_RSS)}, {s(S_WS,4)}, {s(S_A)} offen{sc}"] if not OPT.get('nost') else ["s_nop 0"]
    pend = []
    for tt in range(10):
        L.wait(f'wo{tt}')
        b = WB[tt % 5]; d = DW[tt % 6]
        A(f"v_mfma_f32_16x16x32_bf16 {v(d,4)}, {v(Aop[0],4)}, {v(b,4)}, 0")
        for _ in range(2):
            if pend: A(pend.pop(0))
        A(f"v_mfma_f32_16x16x32_bf16 {v(d,4)}, {v(Aop[1],4)}, {v(b+4,4)}, {v(d,4)}")
        if tt + 5 < 10:
            wo_reads(tt + 5, b)
        for _ in range(2):
            if pend: A(pend.pop(0))
        if tt >= 2 and tt % 2 == 0:
            pend += wo_post(tt - 2)
    for x in pend:
        A(x)
    for x in wo_post(8):
        A(x)
    ts(A, 6, tson)
    if OPT.get('cut') == 8:
        return cut_tail(A, L, Ltop, exit_label)
    X, D, U, Y, NEG = RA, RA + 16, RA + 20, RA + 24, RA + 28
    Lnr = A.newlabel('nored'); Lj = A.newlabel('join')
    A(f"s_cmp_eq_u32 {s(S_ISRED)}, 0")
    A(f"s_cbranch_scc1 {Lnr}")
    loads = [f"buffer_load_dwordx4 {v(X+4*j,4)}, {v(V_RSL0)}, {s(S_WS,4)}, {s(S_RSL)} offen offset:{j*1024} sc1" for j in range(4)]
    def fill_rs():
        for r in range(4):
            A(f"v_mov_b32 {v(NEG+r)}, -1")
        A(f"s_lshr_b32 {s(S_TAG)}, {s(S_STEP)}, 1")
        A(f"s_and_b32 {s(S_TAG)}, {s(S_TAG)}, 1")
    poll(A, loads, list(range(X, X + 16)), fill_rs, pre=OPT.get('pre_rs', 0))
    ts(A, 7, tson)
    for j in range(4):
        A(f"v_mfma_f32_16x16x32_bf16 {v(D,4)}, {v(V_SELR,4)}, {v(X+4*j,4)}, {'0' if j == 0 else v(D,4)}")
    for r in range(4):
        A(f"v_add_f32_dpp {v(U+r)}, {v(D+r)}, {v(D+r)} row_ror:8 row_mask:0xf bank_mask:0xf")
    A(f"v_and_or_b32 {v(U)}, {v(U)}, -2, {s(S_TAG)}")
    A(f"buffer_store_dwordx4 {v(U,4)}, {v(V_PGP)}, {s(S_WS,4)}, {s(S_PGP)} offen sc1")
    if tson:
        A(f"s_sub_u32 {s(S_TSV+13)}, 0x100000, {s(S_SPIN)}")
    ts(A, 10, tson)
    for j in range(4):
        A(f"buffer_store_dwordx4 {v(NEG,4)}, {v(V_RSL0)}, {s(S_WS,4)}, {s(S_RSL)} offen offset:{j*1024}{sc}")
    A(f"buffer_store_dwordx4 {v(NEG,4)}, {v(V_AGS)}, {s(S_WS,4)}, {s(S_AGR)} offen{sc}")
    L.ops = []
    kmvm_prepare(A, L)
    Lw = A.newlabel('exw'); Ld = A.newlabel('exd')
    for _ in range(OPT.get('pre_ex', 0)):
        A("s_nop 15")
    exld = f"buffer_load_dwordx4 {v(Y,4)}, {v(V_PGP)}, {s(S_WS,4)}, {s(S_AGO)} offen sc1"
    A("s_mov_b64 exec, 0x00ff00ff")
    A(exld)
    A(f"s_mov_b32 {s(S_SPIN)}, 0x100000")
    A.label(Lw)
    A("s_waitcnt vmcnt(0)")
    A(f"v_and_b32 {v(RC+17)}, 1, {v(Y)}")
    A(f"v_cmp_ne_u32 vcc, {s(S_TAG)}, {v(RC+17)}")
    A(f"s_cbranch_vccz {Ld}")
    A(exld)
    A(f"s_sub_u32 {s(S_SPIN)}, {s(S_SPIN)}, 1")
    A(f"s_cbranch_scc0 {Lw}")
    A("s_waitcnt vmcnt(0)")
    A.label(Ld)
    A("s_mov_b64 exec, -1")
    if tson:
        A(f"s_sub_u32 {s(S_TSV+14)}, 0x100000, {s(S_SPIN)}")
    ts(A, 8, tson)
    for j in range(2):
        A(f"v_pk_add_f32 {v(U+2*j,2)}, {v(U+2*j,2)}, {v(Y+2*j,2)}")
    A(f"v_cvt_pk_bf16_f32 {v(U)}, {v(U)}, {v(U+1)}")
    A(f"v_cvt_pk_bf16_f32 {v(U+1)}, {v(U+2)}, {v(U+3)}")
    A(f"v_mov_b32 {v(U+2)}, {v(U)}")
    A(f"v_mov_b32 {v(U+3)}, {v(U+1)}")
    A(f"v_permlane16_swap_b32 {v(U)}, {v(U+2)}")
    A(f"v_permlane16_swap_b32 {v(U+1)}, {v(U+3)}")
    A(f"buffer_store_dwordx4 {v(U,4)}, {v(V_AGS)}, {s(S_WS,4)}, {s(S_AGS)} offen{sc}")
    A(f"s_branch {Lj}")
    A.label(Lnr)
    L.ops = []
    kmvm_prepare(A, L)
    A.label(Lj)
    ts(A, 11, tson)
    A("s_barrier")
    ts(A, 12, tson)
    X = RA
    loads = [f"buffer_load_dwordx4 {v(X,4)}, {v(V_AG)}, {s(S_WS,4)}, {s(S_AGS)} offen sc1",
             f"buffer_load_dwordx4 {v(X+4,4)}, {v(V_AG)}, {s(S_WS,4)}, {s(S_AGS)} offen offset:1024 sc1",
             f"buffer_load_dwordx4 {v(X+8,4)}, {v(V_AG2)}, {s(S_WS,4)}, {s(S_AGS)} offen offset:2048 sc1"]
    def fill_ag():
        for d in range(20):
            A(f"v_mov_b32 {v(RB+d)}, 0")
        A(f"s_lshl_b32 {s(S_KMO)}, {s(S_STEP)}, 16")
        A(f"s_add_u32 {s(S_KMO)}, {s(S_KMO)}, {WS_KM}")
        A(f"s_add_u32 {s(S_STEP)}, {s(S_STEP)}, 1")
        A(f"s_xor_b32 {s(S_PGP)}, {s(S_PGP)}, {PG_SLOT}")
        A(f"s_xor_b32 {s(S_AGO)}, {s(S_AGO)}, {PG_SLOT}")
        A(f"s_xor_b32 {s(S_KB)}, {s(S_KB)}, 8192")
        A(f"s_xor_b32 {s(S_RSL)}, {s(S_RSL)}, {RS_SLOT}")
        A(f"s_xor_b32 {s(S_AGR)}, {s(S_AGR)}, {AG_SLOT}")
    poll(A, loads, list(range(X, X + 12)), fill_ag, pre=OPT.get('pre_ag', 0))
    if tson:
        A(f"s_sub_u32 {s(S_TSV+15)}, 0x100000, {s(S_SPIN)}")
    A(f"s_xor_b32 {s(S_AGS)}, {s(S_AGS)}, {AG_SLOT}")
    L.op(f"ds_write_b128 {v(V_LMW)}, {v(X,4)}", 'mw')
    L.op(f"ds_write_b128 {v(V_LMW)}, {v(X+4,4)} offset:1536", 'mw')
    L.op(f"ds_write_b128 {v(V_LMW2)}, {v(X+8,4)} offset:3072", 'mw')
    L.drain()
    ts(A, 9, tson)
    ts_flush(A, tson, RA + 32)
    A("s_barrier")
    A(f"s_branch {Ltop}")
    A.label(Llast)
    L.ops = []
    kmvm_prepare(A, L)
    A(f"s_lshl_b32 {s(S_KMO)}, {s(S_STEP)}, 16")
    A(f"s_add_u32 {s(S_KMO)}, {s(S_KMO)}, {WS_KM}")
    kmvm_store(A)
    A("s_waitcnt vmcnt(0)")
    A(f"s_branch {exit_label}")

def gen_chain(A, tson, exit_label):
    import struct
    gen_prologue(A, tson)
    cb = struct.unpack('<I', struct.pack('<f', SCALE_LOG2E))[0]
    nb = struct.unpack('<I', struct.pack('<f', -SCALE_LOG2E))[0]
    A(f"s_mov_b32 {s(S_POSC)}, {cb:#x}")
    A(f"s_mov_b32 {s(S_POSC+1)}, {cb:#x}")
    A(f"s_mov_b32 {s(S_NEGC)}, {nb:#x}")
    A(f"s_mov_b32 {s(S_KMO)}, {INVALID:#x}")
    for d in range(20):
        A(f"v_mov_b32 {v(RB+d)}, 0")
    Lslow = A.newlabel('slow')
    A(f"s_cmp_eq_u32 {s(S_FAST)}, 0")
    A(f"s_cbranch_scc1 {Lslow}")
    gen_loop(A, tson, True, exit_label, OPT.get('nsteps', 64))
    A.label(Lslow)
    gen_loop(A, tson, False, exit_label, OPT.get('nsteps', 64))
```

```python
from asm import *
from layout import *

class Op:
    def __init__(self, kind, rows, ld, srd):
        self.kind, self.rows, self.ld, self.srd = kind, rows, ld, srd
        self.bytes = rows * 128
        self.ninstr = self.bytes // 1024

class Gemm:
    def __init__(self, A, m, n, nk, vb=0, sb=40, wm=2, wn=2):
        self.A = A; self.m = m; self.n = n; self.nk = nk; self.WM = wm; self.WN = wn
        self.TM = m.rows // (16 * wm); self.TN = n.rows // (16 * wn)
        self.stage = m.bytes + n.bytes
        assert (m.ninstr + n.ninstr) % 4 == 0 and m.ninstr % 4 == 0 and n.ninstr % 4 == 0
        self.dm = m.ninstr // 4; self.dn = n.ninstr // 4
        r = vb
        self.acc = r; r += self.TM * self.TN * 4
        self.fm = [r, r + self.TM * 4]; r += 2 * self.TM * 4
        self.fn = [r, r + self.TN * 4]; r += 2 * self.TN * 4
        self.vdm = r; r += self.dm
        self.vdn = r; r += self.dn
        self.am = r; r += (2 if m.kind == 'kc' else self.TM)
        self.an = r; r += (2 if n.kind == 'kc' else self.TN)
        self.tmp = r; r += 10
        self.vend = r
        self.s_w, self.s_wm, self.s_wn, self.s_mo, self.s_no, self.s_k, self.s_dst, self.s_dl, self.s_t0, self.s_t1, self.s_t2 = range(sb, sb + 11)
        self.send = sb + 11
    def accr(self, tn, tm):
        return self.acc + (tn * self.TM + tm) * 4

    def lanes(self, tid):
        A = self.A; t = self.tmp
        self.lane, self.ln, self.lg = t, t + 1, t + 2
        A(f"v_and_b32 {v(t)}, 63, {v(tid)}")
        A(f"v_and_b32 {v(t+1)}, 15, {v(t)}")
        A(f"v_lshrrev_b32 {v(t+2)}, 4, {v(t)}")
        A(f"v_lshrrev_b32 {v(t+3)}, 6, {v(tid)}")
        A(f"v_readfirstlane_b32 {s(self.s_w)}, {v(t+3)}")
        A(f"s_and_b32 {s(self.s_wm)}, {s(self.s_w)}, {self.WM-1}")
        A(f"s_lshr_b32 {s(self.s_wn)}, {s(self.s_w)}, {self.WM.bit_length()-1}")

    def _dma_offsets(self, op, dst, cnt):
        A = self.A; t = self.tmp; lane = self.lane
        a, b, c, d = t + 4, t + 5, t + 6, t + 7
        for j in range(cnt):
            A(f"s_mul_i32 {s(self.s_t0)}, {s(self.s_w)}, {cnt}")
            A(f"s_add_u32 {s(self.s_t0)}, {s(self.s_t0)}, {j}")
            if op.kind == 'kc' or op.rows == 64:
                A(f"v_lshrrev_b32 {v(a)}, 3, {v(lane)}")
                A(f"s_lshl_b32 {s(self.s_t1)}, {s(self.s_t0)}, 3")
                A(f"v_add_u32 {v(a)}, {s(self.s_t1)}, {v(a)}")
                A(f"v_and_b32 {v(b)}, 7, {v(lane)}")
                if op.kind == 'kc':
                    A(f"v_bfe_u32 {v(c)}, {v(a)}, 1, 3")
                else:
                    A(f"v_bfe_u32 {v(c)}, {v(a)}, 1, 1")
                    A(f"v_bfe_u32 {v(d)}, {v(a)}, 3, 1")
                    A(f"v_lshl_add_u32 {v(c)}, {v(d)}, 1, {v(c)}")
                    A(f"v_lshlrev_b32 {v(c)}, 1, {v(c)}")
                A(f"v_xor_b32 {v(b)}, {v(b)}, {v(c)}")
            else:
                per = op.rows // 8
                rpi = 64 // per
                sh = per.bit_length() - 1
                A(f"v_lshrrev_b32 {v(a)}, {sh}, {v(lane)}")
                A(f"s_mul_i32 {s(self.s_t1)}, {s(self.s_t0)}, {rpi}")
                A(f"v_add_u32 {v(a)}, {s(self.s_t1)}, {v(a)}")
                A(f"v_and_b32 {v(b)}, {per-1}, {v(lane)}")
                A(f"v_and_b32 {v(c)}, 3, {v(a)}")
                A(f"v_bfe_u32 {v(d)}, {v(a)}, 3, 1")
                A(f"v_lshl_add_u32 {v(c)}, {v(d)}, 2, {v(c)}")
                A(f"v_lshlrev_b32 {v(c)}, 1, {v(c)}")
                A(f"v_xor_b32 {v(b)}, {v(b)}, {v(c)}")
            A(f"s_mov_b32 {s(self.s_t1)}, {op.ld}")
            A(f"v_mul_lo_u32 {v(a)}, {v(a)}, {s(self.s_t1)}")
            A(f"v_lshl_add_u32 {v(dst+j)}, {v(b)}, 4, {v(a)}")

    def _read_addrs(self, op, dst, T, swave, base):
        A = self.A; t = self.tmp; n, g = self.ln, self.lg
        a, b, c, d = t + 4, t + 5, t + 6, t + 7
        if op.kind == 'kc':
            A(f"v_bfe_u32 {v(a)}, {v(n)}, 1, 3")
            A(f"v_xor_b32 {v(a)}, {v(a)}, {v(g)}")
            A(f"v_lshlrev_b32 {v(a)}, 4, {v(a)}")
            A(f"v_lshl_add_u32 {v(a)}, {v(n)}, 7, {v(a)}")
            A(f"s_mul_i32 {s(self.s_t0)}, {s(swave)}, {T*2048}")
            A(f"s_add_u32 {s(self.s_t0)}, {s(self.s_t0)}, {base}")
            A(f"v_add_u32 {v(dst)}, {s(self.s_t0)}, {v(a)}")
            A(f"v_xor_b32 {v(dst+1)}, 64, {v(dst)}")
        else:
            rowb = op.rows * 2
            A(f"v_lshrrev_b32 {v(a)}, 2, {v(n)}")
            A(f"v_and_b32 {v(b)}, 3, {v(n)}")
            if op.rows == 64:
                A(f"v_lshrrev_b32 {v(c)}, 1, {v(a)}")
                A(f"v_and_b32 {v(d)}, 1, {v(g)}")
                A(f"v_lshl_add_u32 {v(c)}, {v(d)}, 1, {v(c)}")
            else:
                A(f"v_and_b32 {v(d)}, 1, {v(g)}")
                A(f"v_lshl_add_u32 {v(c)}, {v(d)}, 2, {v(a)}")
            A(f"v_lshlrev_b32 {v(c)}, 1, {v(c)}")
            A(f"v_lshrrev_b32 {v(d)}, 1, {v(b)}")
            A(f"v_xor_b32 {v(c)}, {v(c)}, {v(d)}")
            A(f"v_lshlrev_b32 {v(c)}, 4, {v(c)}")
            A(f"v_and_b32 {v(d)}, 1, {v(b)}")
            A(f"v_lshl_add_u32 {v(c)}, {v(d)}, 3, {v(c)}")
            A(f"v_lshl_add_u32 {v(d)}, {v(g)}, 3, {v(a)}")
            A(f"s_mov_b32 {s(self.s_t0)}, {rowb}")
            A(f"v_mul_lo_u32 {v(d)}, {v(d)}, {s(self.s_t0)}")
            A(f"v_add_u32 {v(c)}, {v(c)}, {v(d)}")
            for tt in range(T):
                A(f"s_mul_i32 {s(self.s_t0)}, {s(swave)}, {T}")
                A(f"s_add_u32 {s(self.s_t0)}, {s(self.s_t0)}, {tt}")
                per_seg = min(8, op.rows // 16)
                A(f"s_and_b32 {s(self.s_t1)}, {s(self.s_t0)}, {per_seg-1}")
                A(f"s_lshl_b32 {s(self.s_t1)}, {s(self.s_t1)}, 5")
                A(f"v_xor_b32 {v(dst+tt)}, {s(self.s_t1)}, {v(c)}")
                A(f"s_lshr_b32 {s(self.s_t0)}, {s(self.s_t0)}, 3")
                A(f"s_lshl_b32 {s(self.s_t0)}, {s(self.s_t0)}, 8")
                A(f"s_add_u32 {s(self.s_t0)}, {s(self.s_t0)}, {base}")
                A(f"v_add_u32 {v(dst+tt)}, {s(self.s_t0)}, {v(dst+tt)}")

    def setup(self, lds_base=0):
        self.lds = lds_base
        self._dma_offsets(self.m, self.vdm, self.dm)
        self._dma_offsets(self.n, self.vdn, self.dn)
        self._read_addrs(self.m, self.am, self.TM, self.s_wm, lds_base)
        self._read_addrs(self.n, self.an, self.TN, self.s_wn, lds_base + self.m.bytes)

    def _issue(self, sdst, fl=''):
        A = self.A
        A(f"s_mul_i32 {s(self.s_t0)}, {s(self.s_w)}, {self.dm*1024}")
        A(f"s_add_u32 {s(self.s_t0)}, {s(self.s_t0)}, {s(sdst)}")
        for j in range(self.dm):
            A(f"s_add_u32 m0, {s(self.s_t0)}, {self.lds + j*1024}")
            A(f"buffer_load_dwordx4 {v(self.vdm+j)}, {s(self.m.srd,4)}, {s(self.s_mo)} offen{fl} lds")
        A(f"s_mul_i32 {s(self.s_t0)}, {s(self.s_w)}, {self.dn*1024}")
        A(f"s_add_u32 {s(self.s_t0)}, {s(self.s_t0)}, {s(sdst)}")
        for j in range(self.dn):
            A(f"s_add_u32 m0, {s(self.s_t0)}, {self.lds + self.m.bytes + j*1024}")
            A(f"buffer_load_dwordx4 {v(self.vdn+j)}, {s(self.n.srd,4)}, {s(self.s_no)} offen lds")
        A(f"s_add_u32 {s(self.s_mo)}, {s(self.s_mo)}, {128 if self.m.kind == 'kc' else 64*self.m.ld}")
        A(f"s_add_u32 {s(self.s_no)}, {s(self.s_no)}, {128 if self.n.kind == 'kc' else 64*self.n.ld}")

    def _reads(self, op, T, addr, frag, kk):
        out = []
        for tt in range(T):
            if op.kind == 'kc':
                out.append(f"ds_read_b128 {v(frag+4*tt,4)}, {v(addr+kk)} offset:{tt*2048}")
            else:
                rowb = op.rows * 2
                for q in range(2):
                    out.append(f"ds_read_b64_tr_b16 {v(frag+4*tt+2*q,2)}, {v(addr+tt)} offset:{(32*kk+4*q)*rowb}")
        return out

    def run(self, mflags=''):
        A = self.A; S = self.stage; nd = self.dm + self.dn
        A(f"s_mov_b32 {s(self.s_dst)}, 0")
        self._issue(self.s_dst, mflags)
        A(f"s_mov_b32 {s(self.s_dst)}, {S}")
        self._issue(self.s_dst, mflags)
        A(f"s_mov_b32 {s(self.s_dst)}, {2*S}")
        for r in range(self.TM * self.TN * 4):
            A(f"v_mov_b32 {v(self.acc+r)}, 0")
        A(f"s_mov_b32 {s(self.s_k)}, 0")
        A(f"s_mov_b32 {s(self.s_dl)}, 0")
        top = A.newlabel('gk'); noissue = A.newlabel('gni'); last = A.newlabel('glast')
        A.label(top)
        A(f"s_cmp_lt_u32 {s(self.s_k)}, {self.nk-1}")
        A(f"s_cbranch_scc1 {noissue}_w")
        A("s_waitcnt vmcnt(0)")
        A(f"s_branch {noissue}_b")
        A.label(f"{noissue}_w")
        A(f"s_waitcnt vmcnt({nd})")
        A.label(f"{noissue}_b")
        A("s_barrier")
        order = self._order(0)
        for x in order['reads']:
            A(x)
        A(f"s_add_u32 {s(self.s_t0)}, {s(self.s_k)}, 2")
        A(f"s_cmp_lt_u32 {s(self.s_t0)}, {self.nk}")
        A(f"s_cbranch_scc0 {noissue}")
        self._issue(self.s_dst, mflags)
        A.label(noissue)
        r1 = self._order(1)['reads']
        A("s_waitcnt lgkmcnt(0)")
        mf0 = self._mfmas(0); mf1 = self._mfmas(1)
        step = max(1, len(mf0) // max(1, len(r1)))
        j = 0
        for i, x in enumerate(mf0):
            A(x)
            if j < len(r1) and i % step == 0:
                A(r1[j]); j += 1
        for x in r1[j:]:
            A(x)
        A("s_waitcnt lgkmcnt(0)")
        A(f"s_add_u32 {s(self.s_dl)}, {s(self.s_dl)}, 1")
        A(f"s_cmp_eq_u32 {s(self.s_dl)}, 3")
        A(f"s_mov_b32 {s(self.s_t1)}, {S}")
        A(f"s_cmov_b32 {s(self.s_t1)}, {-2*S & 0xffffffff:#x}")
        A(f"s_cmov_b32 {s(self.s_dl)}, 0")
        A(f"s_add_u32 {s(self.s_dst)}, {s(self.s_dst)}, {S}")
        A(f"s_cmp_eq_u32 {s(self.s_dst)}, {3*S}")
        A(f"s_cmov_b32 {s(self.s_dst)}, 0")
        regs = list(range(self.am, self.am + (2 if self.m.kind == 'kc' else self.TM))) + list(range(self.an, self.an + (2 if self.n.kind == 'kc' else self.TN)))
        j = 0
        for i, x in enumerate(mf1):
            A(x)
            if j < len(regs):
                A(f"v_add_u32 {v(regs[j])}, {s(self.s_t1)}, {v(regs[j])}"); j += 1
        for r in regs[j:]:
            A(f"v_add_u32 {v(r)}, {s(self.s_t1)}, {v(r)}")
        A(f"s_add_u32 {s(self.s_k)}, {s(self.s_k)}, 1")
        A(f"s_cmp_lt_u32 {s(self.s_k)}, {self.nk}")
        A(f"s_cbranch_scc1 {top}")
        A.settle()

    def _order(self, kk):
        return {'reads': self._reads(self.n, self.TN, self.an, self.fn[kk], kk) + self._reads(self.m, self.TM, self.am, self.fm[kk], kk)}
    def _mfmas(self, kk):
        out = []
        for tn in range(self.TN):
            for tm in range(self.TM):
                d = v(self.accr(tn, tm), 4)
                out.append(f"v_mfma_f32_16x16x32_bf16 {d}, {v(self.fn[kk]+4*tn,4)}, {v(self.fm[kk]+4*tm,4)}, {d}")
        return out

    def reset_addrs(self):
        A = self.A; S = self.stage
        off = (self.nk % 3) * S
        if off:
            regs = list(range(self.am, self.am + (2 if self.m.kind == 'kc' else self.TM))) + list(range(self.an, self.an + (2 if self.n.kind == 'kc' else self.TN)))
            for r in regs:
                A(f"v_subrev_u32 {v(r)}, {off}, {v(r)}")

    def epilogue(self, value, rowop, out_srd, out_ld, s_out, flags='', elem_rows=None):
        A = self.A; t = self.tmp; n, g, lane = self.ln, self.lg, self.lane
        rowb = self.TN * 32 + 16
        wb = self.TM * 16 * rowb
        A("s_barrier")
        wa, ra, go = t + 4, t + 5, t + 6
        A(f"s_mul_i32 {s(self.s_t0)}, {s(self.s_w)}, {wb}")
        A(f"s_add_u32 {s(self.s_t0)}, {s(self.s_t0)}, {self.lds}")
        A(f"v_mul_u32_u24 {v(wa)}, {rowb}, {v(n)}")
        A(f"v_lshl_add_u32 {v(wa)}, {v(g)}, 3, {v(wa)}")
        A(f"v_add_u32 {v(wa)}, {s(self.s_t0)}, {v(wa)}")
        for tn in range(self.TN):
            for tm in range(self.TM):
                d = self.accr(tn, tm)
                value(tn, tm, d)
                A(f"v_cvt_pk_bf16_f32 {v(d)}, {v(d)}, {v(d+1)}")
                A(f"v_cvt_pk_bf16_f32 {v(d+1)}, {v(d+2)}, {v(d+3)}")
                A(f"ds_write_b64 {v(wa)}, {v(d,2)} offset:{tm*16*rowb + tn*32}")
        cpr = self.TN * 2
        rpi = 64 // cpr
        sh = cpr.bit_length() - 1
        A(f"v_lshrrev_b32 {v(ra)}, {sh}, {v(lane)}")
        A(f"v_and_b32 {v(go)}, {cpr-1}, {v(lane)}")
        A(f"s_mov_b32 {s(self.s_t2)}, {out_ld}")
        A(f"v_mul_lo_u32 {v(t+7)}, {v(ra)}, {s(self.s_t2)}")
        A(f"v_mul_u32_u24 {v(ra)}, {rowb}, {v(ra)}")
        A(f"v_lshl_add_u32 {v(ra)}, {v(go)}, 4, {v(ra)}")
        A(f"v_add_u32 {v(ra)}, {s(self.s_t0)}, {v(ra)}")
        A(f"v_lshl_add_u32 {v(go)}, {v(go)}, 4, {v(t+7)}")
        A(f"s_mul_i32 {s(self.s_t0)}, {s(self.s_wm)}, {self.TM*16*out_ld}")
        A(f"s_mul_i32 {s(self.s_t1)}, {s(self.s_wn)}, {self.TN*32}")
        A(f"s_add_u32 {s(self.s_t0)}, {s(self.s_t0)}, {s(self.s_t1)}")
        A(f"s_add_u32 {s(self.s_t0)}, {s(self.s_t0)}, {s(s_out)}")
        A("s_waitcnt lgkmcnt(0)")
        nrd = self.TM * 16 // rpi
        buf = self.acc
        for i in range(nrd):
            A(f"ds_read_b128 {v(buf+4*i,4)}, {v(ra)} offset:{i*rpi*rowb}")
        for i in range(nrd):
            A(f"s_waitcnt lgkmcnt({min(15, nrd-1-i)})")
            if rowop:
                rowop(i, buf + 4*i, go, self.s_t0, rpi)
            A(f"buffer_store_dwordx4 {v(buf+4*i,4)}, {v(go)}, {s(out_srd,4)}, {s(self.s_t0)} offen{flags}")
            A(f"s_add_u32 {s(self.s_t0)}, {s(self.s_t0)}, {rpi*out_ld}")

    epilogue_keep = epilogue
```

```python
from asm import *
from layout import *
from gemm import Gemm, Op
import struct

def f32bits(x):
    return struct.unpack('<I', struct.pack('<f', x))[0]

def begin(A, name, nwg):
    A.raw(f".globl {name}\n.p2align 8\n.type {name},@function")
    A.label(name)
    A(f"s_cmp_ge_u32 s2, {nwg}")
    A(f"s_cbranch_scc1 {name}_exit")

def end(A, name):
    A.label(f"{name}_exit")
    A("s_endpgm")

def descriptor(name, vgpr=256, acc=256, sgpr=102):
    return f""".amdhsa_kernel {name}
  .amdhsa_next_free_vgpr {vgpr}
  .amdhsa_next_free_sgpr {sgpr}
  .amdhsa_accum_offset {acc}
  .amdhsa_group_segment_fixed_size 0
  .amdhsa_kernarg_size 136
  .amdhsa_user_sgpr_count 2
  .amdhsa_user_sgpr_kernarg_segment_ptr 1
  .amdhsa_system_sgpr_workgroup_id_x 1
  .amdhsa_float_denorm_mode_32 3
.end_amdhsa_kernel"""

def srd_fin(A, dst, nbytes):
    A(f"s_and_b32 {s(dst+1)}, {s(dst+1)}, 0xffff")
    A(f"s_mov_b32 {s(dst+2)}, {nbytes}")
    A(f"s_mov_b32 {s(dst+3)}, {SRD3:#x}")

def load_srd(A, dst, key):
    A(f"s_load_dwordx2 {s(dst,2)}, s[0:1], {KA[key]}")

def k_qkv(A, name="qkv_kernel"):
    begin(A, name, 768)
    S_WS, S_W = 4, 8
    load_srd(A, S_WS, 'ws')
    A("s_and_b32 s12, s2, 7"); A("s_lshr_b32 s13, s2, 3")
    A("s_mul_i32 s12, s12, 6"); A("s_lshr_b32 s14, s13, 4"); A("s_add_u32 s12, s12, s14")
    A("s_and_b32 s13, s13, 15")
    A("s_lshr_b32 s14, s12, 4")
    A("s_lshl_b32 s15, s14, 3"); A(f"s_add_u32 s15, s15, {KA['Wq']}")
    A(f"s_load_dwordx2 {s(S_W,2)}, s[0:1], s15")
    A("s_and_b32 s12, s12, 15")
    G = Gemm(A, Op('kc', 128, 1280, S_WS), Op('km', 256, 8192, S_W), 10, vb=2, sb=40)
    G.lanes(0)
    A("s_waitcnt lgkmcnt(0)")
    srd_fin(A, S_WS, WS_BYTES); srd_fin(A, S_W, 640*4096*2)
    G.setup()
    A(f"s_mul_i32 {s(G.s_mo)}, s13, {128*1280}"); A(f"s_add_u32 {s(G.s_mo)}, {s(G.s_mo)}, {WS_H}")
    A(f"s_lshl_b32 {s(G.s_no)}, s12, 9")
    A(f"s_lshl_b32 s16, s14, 24"); A(f"s_add_u32 s16, s16, {WS_Q}")
    A(f"s_mul_i32 s17, s13, {128*8192}"); A("s_add_u32 s16, s16, s17")
    A("s_lshl_b32 s17, s12, 9"); A("s_add_u32 s16, s16, s17")
    G.run()
    G.epilogue(lambda tn, tm, d: None, None, S_WS, 8192, 16)
    A("s_waitcnt vmcnt(0)")
    end(A, name)
    return name, (768, 256, 3 * G.stage), descriptor(name)

def assemble(kernels, header=()):
    A = Asm()
    body = Asm()
    infos = [k(body) for k in kernels]
    out = list(header)
    for name, (g, b, lds), _ in infos:
        out.append(f"; @launch kernel={name} grid=({g},1,1) block=({b},1,1) lds={lds}")
    out.append('.amdgcn_target "amdgcn-amd-amdhsa--gfx950"')
    out.append('.text')
    txt, pads = body.finish()
    desc = '.section .rodata,"a"\n' + '\n'.join('.p2align 6\n' + d for _, _, d in {i[0]: i for i in infos}.values())
    return '\n'.join(out) + '\n' + txt + desc + '\n', pads

def rbf(A, dst, src, tmp=None):
    A(f"v_cvt_pk_bf16_f32 {v(dst)}, {v(src)}, {v(src)}")
    A(f"v_and_b32 {v(dst)}, 0xffff0000, {v(dst)}")

def wave_sum(A, x, t):
    for r in (1, 2, 4, 8):
        A(f"v_add_f32_dpp {v(x)}, {v(x)}, {v(x)} row_ror:{r} row_mask:0xf bank_mask:0xf")
    for sw in ('16', '32'):
        A(f"v_mov_b32 {v(t)}, {v(x)}")
        A(f"v_permlane{sw}_swap_b32 {v(x)}, {v(t)}")
        A(f"v_add_f32 {v(x)}, {v(x)}, {v(t)}")

LOG2E = 1.4426950408889634

def body_mod(A, s_col):
    S_WS, S_C, S_WM = 4, 8, 12
    load_srd(A, S_WS, 'ws'); load_srd(A, S_C, 'c'); load_srd(A, S_WM, 'wmod')
    A("v_and_b32 v1, 63, v0"); A("v_lshrrev_b32 v2, 6, v0")
    A("v_lshrrev_b32 v3, 3, v1"); A("v_lshl_add_u32 v3, v2, 3, v3")
    A("v_and_b32 v4, 7, v1")
    A("s_waitcnt lgkmcnt(0)")
    srd_fin(A, S_WS, WS_BYTES); srd_fin(A, S_C, 1280); srd_fin(A, S_WM, 640*3840*2)
    A("s_movk_i32 s16, 7680")
    A("v_mul_lo_u32 v5, v3, s16"); A("v_lshl_add_u32 v5, v4, 4, v5")
    A(f"s_lshl_b32 s17, {s(s_col)}, 7")
    A("v_lshlrev_b32 v6, 1, v3")
    for i in range(20):
        A(f"buffer_load_ushort v{100+i}, v6, {s(S_C,4)}, 0 offen offset:{i*64}")
    for i in range(20):
        A(f"buffer_load_dwordx4 {v(20+4*i,4)}, v5, {s(S_WM,4)}, s17 offen")
        A(f"s_add_u32 s17, s17, {32*7680}")
    for r in range(8):
        A(f"v_mov_b32 v{10+r}, 0")
    A("s_waitcnt vmcnt(20)")
    for i in range(20):
        c = 100 + i
        A(f"v_lshlrev_b32 v{c}, 16, v{c}")
        A(f"v_mul_f32 v7, {f32bits(-LOG2E):#x}, v{c}")
        A("v_exp_f32 v7, v7"); A("v_add_f32 v7, 1.0, v7"); A("v_rcp_f32 v7, v7")
        A(f"v_mul_f32 v{c}, v{c}, v7")
        rbf(A, c, c)
    for i in range(20):
        A(f"s_waitcnt vmcnt({19-i})")
        for d in range(4):
            A(f"v_lshlrev_b32 v8, 16, v{20+4*i+d}")
            A(f"v_and_b32 v9, 0xffff0000, v{20+4*i+d}")
            A(f"v_fmac_f32 v{10+2*d}, v8, v{100+i}")
            A(f"v_fmac_f32 v{11+2*d}, v9, v{100+i}")
    for r in range(8):
        A(f"v_add_f32_dpp v{10+r}, v{10+r}, v{10+r} row_ror:8 row_mask:0xf bank_mask:0xf")
    for sw in ('16', '32'):
        for r in range(8):
            A(f"v_mov_b32 v{20+r}, v{10+r}")
        for r in range(8):
            A(f"v_permlane{sw}_swap_b32 v{10+r}, v{20+r}")
        for r in range(8):
            A(f"v_add_f32 v{10+r}, v{10+r}, v{20+r}")
    A("v_lshlrev_b32 v8, 5, v4"); A("v_lshl_add_u32 v8, v2, 8, v8")
    A("s_mov_b64 exec, 0xff")
    A("ds_write_b128 v8, v[10:13]"); A("ds_write_b128 v8, v[14:17] offset:16")
    A("s_mov_b64 exec, -1")
    A("s_waitcnt lgkmcnt(0)"); A("s_barrier")
    L = A.newlabel('modw')
    A("v_readfirstlane_b32 s18, v2"); A("s_cmp_lg_u32 s18, 0"); A(f"s_cbranch_scc1 {L}")
    A("v_lshlrev_b32 v8, 2, v1")
    for w in range(4):
        A(f"ds_read_b32 v{10+w}, v8 offset:{w*256}")
    A("s_waitcnt lgkmcnt(0)")
    A("v_add_f32 v10, v10, v11"); A("v_add_f32 v12, v12, v13"); A("v_add_f32 v10, v10, v12")
    rbf(A, 10, 10)
    A(f"s_cmp_ge_u32 {s(s_col)}, 10"); A("s_cselect_b32 s18, 1, 0")
    A(f"s_cmp_lt_u32 {s(s_col)}, 20"); A("s_cselect_b32 s18, s18, 0")
    A(f"s_cmp_ge_u32 {s(s_col)}, 40"); A("s_cselect_b32 s19, 1, 0")
    A(f"s_cmp_lt_u32 {s(s_col)}, 50"); A("s_cselect_b32 s19, s19, 0")
    A("s_or_b32 s18, s18, s19")
    L2 = A.newlabel('mod1')
    A("s_cmp_eq_u32 s18, 0"); A(f"s_cbranch_scc1 {L2}")
    A("v_add_f32 v10, 1.0, v10"); rbf(A, 10, 10)
    A.label(L2)
    A(f"s_lshl_b32 s17, {s(s_col)}, 8"); A(f"s_add_u32 s17, s17, {WS_MOD}")
    A(f"buffer_store_dword v10, v8, {s(S_WS,4)}, s17 offen sc1")
    A("s_waitcnt vmcnt(0)")
    A.label(L)

def k_mod(A, name="mod_kernel"):
    begin(A, name, 60)
    A("s_mov_b32 s20, s2")
    body_mod(A, 20)
    end(A, name)
    return name, (60, 256, 1024), descriptor(name, 128, 128)

def body_ln(A, src_srd, src_off, dst_off, shift_row, scale_row, s_row, nrows, flags=''):
    X = 10; T = 30; MS = 40; MC = 50
    A("v_lshlrev_b32 v2, 2, v1")
    A("v_lshlrev_b32 v3, 3, v1")
    for j in range(5):
        A(f"buffer_load_dwordx2 {v(MS+2*j,2)}, v3, s[4:7], s21 offen offset:{j*512}")
        A(f"buffer_load_dwordx2 {v(MC+2*j,2)}, v3, s[4:7], s22 offen offset:{j*512}")
    for r in range(nrows):
        A(f"s_add_u32 s24, {s(s_row)}, {r}")
        A("s_mul_i32 s24, s24, 1280")
        A(f"s_add_u32 s25, s24, {src_off}")
        for j in range(5):
            A(f"buffer_load_dword v{X+10*0+5+j}, v2, {s(src_srd,4)}, s25 offen offset:{j*256}")
        A("s_waitcnt vmcnt(0)")
        for j in range(5):
            A(f"v_lshlrev_b32 v{T+2*j}, 16, v{X+5+j}")
            A(f"v_and_b32 v{T+2*j+1}, 0xffff0000, v{X+5+j}")
        A(f"v_add_f32 v4, v{T}, v{T+1}")
        for j in range(2, 10):
            A(f"v_add_f32 v4, v4, v{T+j}")
        wave_sum(A, 4, 5)
        A(f"v_mul_f32 v4, {f32bits(1/640):#x}, v4")
        A("v_mov_b32 v6, 0")
        for j in range(10):
            A(f"v_sub_f32 v5, v{T+j}, v4")
            A("v_fmac_f32 v6, v5, v5")
        wave_sum(A, 6, 5)
        A(f"v_mul_f32 v6, {f32bits(1/640):#x}, v6")
        rbf(A, 6, 6)
        A(f"v_add_f32 v6, {f32bits(1e-5):#x}, v6"); rbf(A, 6, 6)
        A("v_sqrt_f32 v6, v6"); A("s_nop 0"); rbf(A, 6, 6)
        A("v_rcp_f32 v7, v6")
        rbf(A, 4, 4)
        for j in range(10):
            x = T + j
            A(f"v_sub_f32 v{x}, v{x}, v4"); rbf(A, x, x)
            A(f"v_mul_f32 v5, v{x}, v7")
            A(f"v_fma_f32 v8, -v5, v6, v{x}")
            A(f"v_fma_f32 v{x}, v8, v7, v5"); rbf(A, x, x)
            A(f"v_mul_f32 v{x}, v{x}, v{MC+j}"); rbf(A, x, x)
            A(f"v_add_f32 v{x}, v{x}, v{MS+j}")
        A(f"s_add_u32 s25, s24, {dst_off}")
        for j in range(5):
            A(f"v_cvt_pk_bf16_f32 v{X+j}, v{T+2*j}, v{T+2*j+1}")
            A(f"buffer_store_dword v{X+j}, v2, s[4:7], s25 offen offset:{j*256}{flags}")

def k_ln(first):
    def gen(A):
        name = "ln1_kernel" if first else "ln2_kernel"
        begin(A, name, 512)
        load_srd(A, 4, 'ws')
        if first: load_srd(A, 8, 'x')
        A("v_and_b32 v1, 63, v0"); A("v_lshrrev_b32 v2, 6, v0"); A("v_readfirstlane_b32 s20, v2")
        A("s_lshl_b32 s23, s2, 2"); A("s_add_u32 s20, s20, s23")
        A(f"s_mov_b32 s21, {WS_MOD + (0 if first else 3*2560)}")
        A(f"s_mov_b32 s22, {WS_MOD + (2560 if first else 4*2560)}")
        A("s_waitcnt lgkmcnt(0)")
        srd_fin(A, 4, WS_BYTES)
        if first: srd_fin(A, 8, 2048*1280)
        body_ln(A, 8 if first else 4, 0 if first else WS_X1, WS_H if first else WS_H2, 0, 0, 20, 1)
        A("s_waitcnt vmcnt(0)")
        end(A, name)
        return name, (512, 256, 0), descriptor(name, 64, 64)
    return gen
k_ln1 = k_ln(True); k_ln2 = k_ln(False)

def unpack_add_pack(A, dst, other, t):
    for d in range(4):
        A(f"v_lshlrev_b32 {v(t)}, 16, {v(dst+d)}")
        A(f"v_lshlrev_b32 {v(t+1)}, 16, {v(other+d)}")
        A(f"v_and_b32 {v(t+2)}, 0xffff0000, {v(dst+d)}")
        A(f"v_and_b32 {v(t+3)}, 0xffff0000, {v(other+d)}")
        A(f"v_add_f32 {v(t)}, {v(t)}, {v(t+1)}")
        A(f"v_add_f32 {v(t+2)}, {v(t+2)}, {v(t+3)}")
        A(f"v_cvt_pk_bf16_f32 {v(dst+d)}, {v(t)}, {v(t+2)}")

def resid_gemm(A, G, gate_off, res_srd, res_soff_sgpr, out_srd, out_ld, s_out, s_ncol, bias_m=None, flags=''):
    t = G.tmp; n, g = G.ln, G.lg
    gate = G.fn[0]
    bm = G.fm[0]
    resb = G.fm[1] if G.TM * 4 >= 0 else 0
    A(f"s_mul_i32 {s(G.s_t0)}, {s(G.s_wn)}, {G.TN*16}")
    A(f"s_add_u32 {s(G.s_t0)}, {s(G.s_t0)}, {s(s_ncol)}")
    A(f"s_lshl_b32 {s(G.s_t0)}, {s(G.s_t0)}, 2")
    A(f"s_add_u32 {s(G.s_t0)}, {s(G.s_t0)}, {gate_off}")
    A(f"v_lshlrev_b32 {v(t+8)}, 4, {v(g)}")
    for tn in range(G.TN):
        A(f"buffer_load_dwordx4 {v(gate+4*tn,4)}, {v(t+8)}, s[4:7], {s(G.s_t0)} offen offset:{tn*64}")
    if bias_m:
        bsrd, s_mrow = bias_m
        A(f"s_mul_i32 {s(G.s_t0)}, {s(G.s_wm)}, {G.TM*16}")
        A(f"s_add_u32 {s(G.s_t0)}, {s(G.s_t0)}, {s(s_mrow)}")
        A(f"s_lshl_b32 {s(G.s_t0)}, {s(G.s_t0)}, 1")
        A(f"v_lshlrev_b32 {v(t+8)}, 1, {v(n)}")
        for tm in range(G.TM):
            A(f"buffer_load_ushort {v(bm+tm)}, {v(t+8)}, {s(bsrd,4)}, {s(G.s_t0)} offen offset:{tm*32}")
    A("s_waitcnt vmcnt(0)")
    if bias_m:
        for tm in range(G.TM):
            A(f"v_lshlrev_b32 {v(bm+tm)}, 16, {v(bm+tm)}")
    def value(tn, tm, d):
        for r in range(4):
            rbf(A, d + r, d + r)
            if bias_m:
                A(f"v_add_f32 {v(d+r)}, {v(d+r)}, {v(bm+tm)}"); rbf(A, d + r, d + r)
            A(f"v_mul_f32 {v(d+r)}, {v(d+r)}, {v(gate+4*tn+r)}")
    rb = G.fn[1]
    def rowop(i, reg, voff, soff, rpi):
        A(f"s_sub_u32 {s(G.s_t2)}, {s(soff)}, {s(s_out)}")
        A(f"s_add_u32 {s(G.s_t2)}, {s(G.s_t2)}, {s(res_soff_sgpr)}")
        A(f"buffer_load_dwordx4 {v(rb,4)}, {v(voff)}, {s(res_srd,4)}, {s(G.s_t2)} offen")
        A("s_waitcnt vmcnt(0)")
        unpack_add_pack(A, reg, rb, rb + 4)
    G.epilogue(value, rowop, out_srd, out_ld, s_out, flags)

def k_wo(A, name="wo_kernel"):
    begin(A, name, 160)
    load_srd(A, 4, 'ws'); load_srd(A, 8, 'Wo'); load_srd(A, 12, 'x')
    A("s_and_b32 s17, s2, 15"); A("s_lshr_b32 s16, s2, 4")
    G = Gemm(A, Op('kc', 128, 8192, 4), Op('km', 64, 1280, 8), 64, vb=2, sb=40)
    G.lanes(0)
    A("s_waitcnt lgkmcnt(0)")
    srd_fin(A, 4, WS_BYTES); srd_fin(A, 8, 4096*1280); srd_fin(A, 12, 2048*1280)
    G.setup()
    A(f"s_mul_i32 {s(G.s_mo)}, s17, {128*8192}"); A(f"s_add_u32 {s(G.s_mo)}, {s(G.s_mo)}, {WS_O}")
    A(f"s_lshl_b32 {s(G.s_no)}, s16, 7")
    A(f"s_mul_i32 s18, s17, {128*1280}"); A("s_lshl_b32 s19, s16, 7"); A("s_add_u32 s18, s18, s19")
    A(f"s_add_u32 s19, s18, {WS_X1}")
    A("s_lshl_b32 s20, s16, 6")
    G.run()
    resid_gemm(A, G, WS_MOD + 2*2560, 12, 18, 4, 1280, 19, 20)
    A("s_waitcnt vmcnt(0)")
    end(A, name)
    return name, (160, 256, 3 * G.stage), descriptor(name)

def k_mlp1(A, name="mlp1_kernel"):
    begin(A, name, 135)
    load_srd(A, 4, 'ws'); load_srd(A, 8, 'w1'); load_srd(A, 12, 'b1')
    A("s_mul_hi_u32 s16, s2, 0x33333334"); A("s_mul_i32 s17, s16, 5"); A("s_sub_u32 s17, s2, s17")
    G = Gemm(A, Op('km', 128, 1280, 4), Op('km', 64, 3456, 8), 32, vb=2, sb=40)
    G.lanes(0)
    A("s_waitcnt lgkmcnt(0)")
    srd_fin(A, 4, WS_BYTES); srd_fin(A, 8, 2048*3456); srd_fin(A, 12, 3456)
    G.setup()
    A(f"s_lshl_b32 {s(G.s_mo)}, s17, 8"); A(f"s_add_u32 {s(G.s_mo)}, {s(G.s_mo)}, {WS_H2}")
    A(f"s_lshl_b32 {s(G.s_no)}, s16, 7")
    A(f"s_mul_i32 s18, s17, {128*3456}"); A("s_lshl_b32 s19, s16, 7"); A("s_add_u32 s18, s18, s19"); A(f"s_add_u32 s18, s18, {WS_U}")
    G.run()
    mlp1_epilogue(A, G, 16, 18)
    A("s_waitcnt vmcnt(0)")
    end(A, name)
    return name, (135, 256, 3 * G.stage), descriptor(name)

def mlp1_epilogue(A, G, s_nb, s_out, flags=''):
    t = G.tmp; g = G.lg; bb = G.fn[0]
    A(f"s_lshl_b32 {s(G.s_t0)}, {s(s_nb)}, 7")
    A(f"s_mul_i32 {s(G.s_t1)}, {s(G.s_wn)}, {G.TN*32}")
    A(f"s_add_u32 {s(G.s_t0)}, {s(G.s_t0)}, {s(G.s_t1)}")
    A(f"v_lshlrev_b32 {v(t+8)}, 3, {v(g)}")
    for tn in range(G.TN):
        A(f"buffer_load_dwordx2 {v(bb+4*tn,2)}, {v(t+8)}, s[12:15], {s(G.s_t0)} offen offset:{tn*32}")
    A("s_waitcnt vmcnt(0)")
    for tn in range(G.TN):
        b = bb + 4*tn
        A(f"v_and_b32 {v(b+3)}, 0xffff0000, {v(b+1)}"); A(f"v_lshlrev_b32 {v(b+2)}, 16, {v(b+1)}")
        A(f"v_and_b32 {v(b+1)}, 0xffff0000, {v(b)}"); A(f"v_lshlrev_b32 {v(b)}, 16, {v(b)}")
    c1 = 0.7978845608028654; c2 = 0.044715
    A(f"s_mov_b32 {s(G.s_t1)}, {f32bits(c2):#x}")
    A(f"s_mov_b32 {s(G.s_t2)}, {f32bits(-2*c1*LOG2E):#x}")
    x, y = t + 8, t + 9
    def value(tn, tm, d):
        for r in range(4):
            u = d + r
            rbf(A, u, u)
            A(f"v_add_f32 {v(u)}, {v(u)}, {v(bb+4*tn+r)}"); rbf(A, u, u)
            A(f"v_mul_f32 {v(x)}, {v(u)}, {v(u)}")
            A(f"v_fma_f32 {v(x)}, {v(x)}, {s(G.s_t1)}, 1.0")
            A(f"v_mul_f32 {v(x)}, {v(x)}, {v(u)}")
            A(f"v_mul_f32 {v(x)}, {s(G.s_t2)}, {v(x)}")
            A(f"v_exp_f32 {v(x)}, {v(x)}")
            A(f"v_add_f32 {v(x)}, 1.0, {v(x)}")
            A(f"v_rcp_f32 {v(x)}, {v(x)}")
            A(f"v_mul_f32 {v(u)}, {v(u)}, {v(x)}")
    G.epilogue_keep(value, None, 4, 3456, s_out, flags)

def k_mlp2(A, name="mlp2_kernel"):
    begin(A, name, 160)
    load_srd(A, 4, 'ws'); load_srd(A, 8, 'w2'); load_srd(A, 12, 'b2'); load_srd(A, 24, 'out')
    A("s_and_b32 s17, s2, 15"); A("s_lshr_b32 s16, s2, 4")
    G = Gemm(A, Op('km', 128, 4096, 8), Op('kc', 64, 3456, 4), 27, vb=2, sb=40)
    G.lanes(0)
    A("s_waitcnt lgkmcnt(0)")
    srd_fin(A, 4, WS_BYTES); srd_fin(A, 8, 1728*4096); srd_fin(A, 12, 4096); srd_fin(A, 24, 2048*1280)
    G.setup()
    A(f"s_lshl_b32 {s(G.s_mo)}, s17, 8")
    A(f"s_mul_i32 {s(G.s_no)}, s16, {64*3456}"); A(f"s_add_u32 {s(G.s_no)}, {s(G.s_no)}, {WS_U}")
    A(f"s_mul_i32 s19, s17, {128*1280}"); A("s_lshl_b32 s18, s16, 7"); A("s_add_u32 s19, s19, s18")
    A(f"s_add_u32 s18, s19, {WS_X1}")
    A("s_lshl_b32 s20, s16, 6"); A("s_lshl_b32 s21, s17, 7")
    G.run()
    resid_gemm(A, G, WS_MOD + 5*2560, 4, 18, 24, 1280, 19, 20, bias_m=(12, 21))
    A("s_waitcnt vmcnt(0)")
    end(A, name)
    return name, (160, 256, 3 * G.stage), descriptor(name)

ATT_C = 0.08838834764831845 * LOG2E

def body_att(A, s_seg, s_head, lds_wave, flags='', ldfl=''):
    n, g = 2, 3
    FQ, FK, FM, VMF = 10, 42, 74, 90
    VF = 106
    SC = 138
    PK = 158
    ONE = 170
    DEN = 174
    O = 182
    t = 4
    A(f"v_and_b32 v{n}, 15, v1"); A(f"v_lshrrev_b32 v{g}, 4, v1")
    A(f"s_lshl_b32 s30, {s(s_seg)}, 18"); A(f"s_lshl_b32 s31, {s(s_head)}, 8"); A("s_add_u32 s30, s30, s31")
    A(f"v_lshlrev_b32 v{t}, 13, v{n}"); A(f"v_lshl_add_u32 v{t}, v{g}, 4, v{t}")
    A(f"s_add_u32 s31, s30, {WS_Q}"); A(f"s_add_u32 s32, s30, {WS_K}"); A(f"s_add_u32 s33, s30, {WS_V}")
    for i in range(8):
        A(f"v_add_u32 v{t+1}, {4*(i&1)}, v{g}"); A(f"v_lshlrev_b32 v{t+1}, 1, v{t+1}"); A(f"v_xor_b32 v{t+1}, v{t+1}, v{n}")
        A(f"v_lshlrev_b32 v{t+1}, 4, v{t+1}"); A(f"v_lshl_add_u32 v{t+1}, v{g}, 13, v{t+1}")
        A(f"s_add_u32 m0, {s(lds_wave)}, {i*1024}"); A(f"s_add_u32 s34, s33, {4*i*8192}")
        A(f"buffer_load_dwordx4 v{t+1}, s[4:7], s34 offen{ldfl} lds")
    A(f"s_lshl_b32 s34, {s(s_seg)}, 5"); A(f"s_add_u32 s34, s34, {s(s_head)}"); A("s_lshl_b32 s34, s34, 11")
    A(f"s_add_u32 s35, s34, {WS_KM}"); A(f"s_add_u32 s36, s34, {WS_VM}")
    A(f"v_lshlrev_b32 v{t+1}, 4, v1")
    for i in range(2):
        A(f"s_add_u32 m0, {s(lds_wave)}, {8192 + i*1024}")
        A(f"buffer_load_dwordx4 v{t+1}, s[4:7], s35 offen{ldfl} lds")
        A("s_add_u32 s35, s35, 1024")
    for tl in range(2):
        for ks in range(4):
            A(f"buffer_load_dwordx4 {v(FQ+16*tl+4*ks,4)}, v{t}, s[4:7], s31 offen offset:{ks*64}{ldfl}")
            A(f"buffer_load_dwordx4 {v(FK+16*tl+4*ks,4)}, v{t}, s[4:7], s32 offen offset:{ks*64}{ldfl}")
        A(f"s_add_u32 s31, s31, {16*8192}"); A(f"s_add_u32 s32, s32, {16*8192}")
    A(f"v_and_b32 v{t+1}, 1, v{g}"); A(f"v_lshlrev_b32 v{t+1}, 3, v{t+1}"); A(f"v_lshl_add_u32 v{t+1}, v{n}, 4, v{t+1}")
    for tl in range(8):
        A(f"buffer_load_dwordx2 {v(VMF+2*tl,2)}, v{t+1}, s[4:7], s36 offen offset:{tl*256}{ldfl}")
    for r in range(4):
        A(f"v_lshl_add_u32 v{t+2}, v{g}, 2, {r}")
        A(f"v_cmp_gt_u32 {s(60+2*r,2)}, v{t+2}, v{n}")
    A(f"v_cmp_lt_u32 s[68:69], 1, v{g}")
    for d in range(4):
        A(f"v_mov_b32 v{ONE+d}, 0x3f803f80")
    rr, cc = t + 2, t + 3
    A(f"v_lshrrev_b32 v{rr}, 2, v{n}"); A(f"v_and_b32 v{cc}, 3, v{n}")
    ka, va = 8, 9
    A(f"v_lshl_add_u32 v{ka}, v{g}, 3, v{rr}"); A(f"v_lshlrev_b32 v{ka}, 4, v{ka}")
    A(f"v_and_b32 v{t+1}, 1, v{cc}"); A(f"v_lshl_add_u32 v{ka}, v{t+1}, 3, v{ka}")
    A(f"v_add_u32 v{ka}, {s(lds_wave)}, v{ka}"); A(f"v_add_u32 v{ka}, 8192, v{ka}")
    A(f"v_lshl_add_u32 v{va}, v{g}, 2, v{rr}")
    A(f"v_and_b32 v{t}, 7, v{va}"); A(f"v_lshlrev_b32 v{t}, 1, v{t}"); A(f"v_lshrrev_b32 v{t+1}, 1, v{cc}")
    A(f"v_xor_b32 v{t}, v{t}, v{t+1}"); A(f"v_lshlrev_b32 v{t}, 4, v{t}")
    A(f"v_lshl_add_u32 v{t}, v{va}, 8, v{t}"); A(f"v_and_b32 v{t+1}, 1, v{cc}"); A(f"v_lshl_add_u32 v{t}, v{t+1}, 3, v{t}")
    A(f"v_add_u32 v{va}, {s(lds_wave)}, v{t}")
    A("s_waitcnt vmcnt(0)")
    for ks in range(4):
        for q in range(2):
            A(f"ds_read_b64_tr_b16 {v(FM+4*ks+2*q,2)}, v{ka} offset:{ks*512 + q*64}")
    for tl in range(8):
        A(f"v_xor_b32 v{t}, {32*tl}, v{va}")
        A(f"ds_read_b64_tr_b16 {v(VF+4*tl,2)}, v{t}")
        A(f"ds_read_b64_tr_b16 {v(VF+4*tl+2,2)}, v{t} offset:4096")
    Sm = [SC, SC + 8]; Sx0 = [SC + 4, SC + 12]; Sx1 = SC + 16
    for ks in range(4):
        c = lambda d: '0' if ks == 0 else v(d, 4)
        A(f"v_mfma_f32_16x16x32_bf16 {v(Sx0[0],4)}, {v(FK+4*ks,4)}, {v(FQ+4*ks,4)}, {c(Sx0[0])}")
        A(f"v_mfma_f32_16x16x32_bf16 {v(Sx0[1],4)}, {v(FK+4*ks,4)}, {v(FQ+16+4*ks,4)}, {c(Sx0[1])}")
        A(f"v_mfma_f32_16x16x32_bf16 {v(Sx1,4)}, {v(FK+16+4*ks,4)}, {v(FQ+16+4*ks,4)}, {c(Sx1)}")
    A("s_waitcnt lgkmcnt(0)")
    for ks in range(4):
        c = lambda d: '0' if ks == 0 else v(d, 4)
        A(f"v_mfma_f32_16x16x32_bf16 {v(Sm[0],4)}, {v(FM+4*ks,4)}, {v(FQ+4*ks,4)}, {c(Sm[0])}")
        A(f"v_mfma_f32_16x16x32_bf16 {v(Sm[1],4)}, {v(FM+4*ks,4)}, {v(FQ+16+4*ks,4)}, {c(Sm[1])}")
    NEG = t + 1
    A(f"v_mov_b32 v{NEG}, {f32bits(-1e30):#x}")
    A(f"s_mov_b32 s37, {f32bits(ATT_C):#x}"); A(f"s_mov_b32 s38, {f32bits(-ATT_C):#x}")
    A.settle()
    for qt in range(2):
        diag = Sx0[0] if qt == 0 else Sx1
        for r in range(4):
            A(f"v_cndmask_b32 v{diag+r}, v{diag+r}, v{NEG}, {s(60+2*r,2)}")
            A(f"v_cndmask_b32 v{Sm[qt]+r}, v{Sm[qt]+r}, v{NEG}, s[68:69]")
        regs = list(range(Sm[qt], Sm[qt]+4)) + list(range(Sx0[qt], Sx0[qt]+4)) + (list(range(Sx1, Sx1+4)) if qt else [])
        mx, tm = t + 2, t + 3
        A(f"v_max3_f32 v{mx}, v{regs[0]}, v{regs[1]}, v{regs[2]}")
        rest = regs[3:]
        while len(rest) >= 2:
            A(f"v_max3_f32 v{mx}, v{mx}, v{rest[0]}, v{rest[1]}"); rest = rest[2:]
        if rest: A(f"v_max_f32 v{mx}, v{mx}, v{rest[0]}")
        for sw in ('32', '16'):
            A(f"v_mov_b32 v{tm}, v{mx}"); A(f"v_permlane{sw}_swap_b32 v{mx}, v{tm}"); A(f"v_max_f32 v{mx}, v{mx}, v{tm}")
        A(f"v_mul_f32 v{mx}, s38, v{mx}")
        for r in regs:
            A(f"v_fma_f32 v{r}, v{r}, s37, v{mx}"); A(f"v_exp_f32 v{r}, v{r}")
        P = PK + 6*qt
        A(f"v_cvt_pk_bf16_f32 v{P}, v{Sx0[qt]}, v{Sx0[qt]+1}"); A(f"v_cvt_pk_bf16_f32 v{P+1}, v{Sx0[qt]+2}, v{Sx0[qt]+3}")
        if qt:
            A(f"v_cvt_pk_bf16_f32 v{P+2}, v{Sx1}, v{Sx1+1}"); A(f"v_cvt_pk_bf16_f32 v{P+3}, v{Sx1+2}, v{Sx1+3}")
        else:
            A(f"v_mov_b32 v{P+2}, 0"); A(f"v_mov_b32 v{P+3}, 0")
        A(f"v_cvt_pk_bf16_f32 v{P+4}, v{Sm[qt]}, v{Sm[qt]+1}"); A(f"v_cvt_pk_bf16_f32 v{P+5}, v{Sm[qt]+2}, v{Sm[qt]+3}")
    for qt in range(2):
        P = PK + 6*qt
        A(f"v_mfma_f32_16x16x32_bf16 {v(DEN+4*qt,4)}, {v(ONE,4)}, {v(P,4)}, 0")
        for tl in range(8):
            A(f"v_mfma_f32_16x16x32_bf16 {v(O+32*qt+4*tl,4)}, {v(VF+4*tl,4)}, {v(P,4)}, 0")
    for qt in range(2):
        P = PK + 6*qt
        A(f"v_mfma_f32_16x16x16_bf16 {v(DEN+4*qt,4)}, {v(ONE,2)}, {v(P+4,2)}, {v(DEN+4*qt,4)}")
        for tl in range(8):
            d = v(O+32*qt+4*tl, 4)
            A(f"v_mfma_f32_16x16x16_bf16 {d}, {v(VMF+2*tl,2)}, {v(P+4,2)}, {d}")
    A.settle()
    A(f"v_and_b32 v{t}, 1, v{g}"); A(f"v_lshlrev_b32 v{t}, 5, v{t}"); A(f"v_lshrrev_b32 v{t+1}, 1, v{g}")
    A(f"v_lshl_add_u32 v{t}, v{t+1}, 4, v{t}"); A(f"v_lshl_add_u32 v{t}, v{n}, 13, v{t}")
    A(f"s_add_u32 s31, s30, {WS_O}")
    for qt in range(2):
        A(f"v_rcp_f32 v{t+1}, v{DEN+4*qt}")
        for p in range(4):
            b = O + 32*qt + 8*p
            for r in range(8):
                A(f"v_mul_f32 v{b+r}, v{b+r}, v{t+1}")
            A(f"v_cvt_pk_bf16_f32 v{b}, v{b}, v{b+1}"); A(f"v_cvt_pk_bf16_f32 v{b+1}, v{b+2}, v{b+3}")
            A(f"v_cvt_pk_bf16_f32 v{b+2}, v{b+4}, v{b+5}"); A(f"v_cvt_pk_bf16_f32 v{b+3}, v{b+6}, v{b+7}")
            A(f"v_permlane16_swap_b32 v{b}, v{b+2}"); A(f"v_permlane16_swap_b32 v{b+1}, v{b+3}")
            A(f"buffer_store_dwordx4 {v(b,4)}, v{t}, s[4:7], s31 offen offset:{64*p}{flags}")
        A(f"s_add_u32 s31, s31, {16*8192}")

def k_att(A, name="att_kernel"):
    begin(A, name, 512)
    load_srd(A, 4, 'ws')
    A("v_and_b32 v1, 63, v0"); A("v_lshrrev_b32 v2, 6, v0"); A("v_readfirstlane_b32 s20, v2")
    A("s_lshr_b32 s21, s2, 3")
    A("s_and_b32 s22, s2, 7"); A("s_lshl_b32 s22, s22, 2"); A("s_add_u32 s22, s22, s20")
    A("s_mul_i32 s23, s20, 10240")
    A("s_waitcnt lgkmcnt(0)")
    srd_fin(A, 4, WS_BYTES)
    body_att(A, 21, 22, 23)
    A("s_waitcnt vmcnt(0)")
    end(A, name)
    return name, (512, 256, 40960), descriptor(name)

def body_probe(A):
    A("s_getreg_b32 s20, hwreg(HW_REG_XCC_ID, 0, 4)"); A("s_and_b32 s20, s20, 7"); A("s_lshr_b32 s20, s20, 2")
    A("s_mov_b32 s21, 0x7fffffff"); A("s_mov_b32 s22, 0x7fffffff")
    A("v_mov_b32 v2, 0"); A("v_mov_b32 v3, -1")
    A("s_mov_b64 exec, 1")
    for rep in range(6):
        for c in range(2):
            A(f"s_mov_b32 s23, {WS_PG + c*8192 + rep*256}")
            A("buffer_store_dword v3, v2, s[4:7], s23 offen sc1"); A("s_waitcnt vmcnt(0)")
            A("s_memtime s[24:25]"); A("s_waitcnt lgkmcnt(0)")
            A("buffer_load_dword v4, v2, s[4:7], s23 offen sc1"); A("s_waitcnt vmcnt(0)")
            A("s_memtime s[26:27]"); A("s_waitcnt lgkmcnt(0)")
            A("s_sub_u32 s26, s26, s24"); A(f"s_min_u32 s{21+c}, s{21+c}, s26")
    A("s_cmp_lt_u32 s22, s21"); A("s_cselect_b32 s23, 1, 0"); A("s_xor_b32 s23, s23, s20")
    A("v_mov_b32 v3, s23"); A(f"s_mov_b32 s24, {WS_PAR}")
    A("buffer_store_dword v3, v2, s[4:7], s24 offen"); A("s_waitcnt vmcnt(0)")
    A("s_mov_b64 exec, -1")

def k_pre(A, name="pre_kernel"):
    begin(A, name, 61)
    L = A.newlabel('probe')
    A("s_cmp_eq_u32 s2, 60"); A(f"s_cbranch_scc1 {L}")
    A("s_mov_b32 s20, s2")
    body_mod(A, 20)
    A(f"s_branch {name}_exit")
    A.label(L)
    load_srd(A, 4, 'ws'); A("s_waitcnt lgkmcnt(0)"); srd_fin(A, 4, WS_BYTES)
    A("v_lshrrev_b32 v2, 6, v0"); A("v_readfirstlane_b32 s20, v2"); A("s_cmp_lg_u32 s20, 0"); A(f"s_cbranch_scc1 {name}_exit")
    body_probe(A)
    end(A, name)
    return name, (61, 256, 1024), descriptor(name, 128, 128)

def k_chain(A, name="chain_kernel"):
    import chain
    begin(A, name, 256)
    chain.gen_roles(A, f"{name}_exit")
    chain.gen_chain(A, False, f"{name}_exit")
    end(A, name)
    return name, (256, 256, 163840), descriptor(name, 512, 256)
```

```python
KA = dict(x=0, mem0=8, Wq=16, Wk=24, Wv=32, Wo=40, seg=48, Bx=56, w1=64, b1=72, w2=80, b2=88, c=96, wmod=104, out=112, dbg=120, ws=128)
WS_BYTES = 0x10000000
WS_MOD = 0x0000000
WS_H   = 0x0100000
WS_X1  = 0x0400000
WS_H2  = 0x0700000
WS_U   = 0x0A00000
WS_PG  = 0x5800000
WS_RS  = 0x5C00000
WS_AGB = 0x5E00000
WS_MEM = 0x5E40000
WS_TS  = 0x5F00000
WS_Q   = 0x1000000
WS_K   = 0x2000000
WS_V   = 0x3000000
WS_O   = 0x4000000
WS_KM  = 0x5000000
WS_VM  = 0x5400000
INVALID = 0x40000000
SRD3 = 0x00020000
WS_PAR = 0x00F0000
```

```python
import sys, kernels as K, chain
NAME = "adaLN_cond__memory_aug_recurrent_mem_tr__mixer_token_mlp__prompt"
ref = open(f"cdna_kernels/{NAME}.s.ref").read().split('\n')
hdr = []
for ln in ref:
    if ln.startswith('; @launch') or ln.startswith('; Override') or ln.startswith('; grid='): continue
    if not ln.startswith(';'): break
    hdr.append(ln)
opts = dict(kv.split('=') for kv in sys.argv[2:] if '=' in kv)
chain.OPT.update({k: int(v) for k, v in opts.items()})
chain.OPT.setdefault('pre_rs', 3); chain.OPT.setdefault('pre_ex', 3); chain.OPT.setdefault('pre_ag', 3)
txt, pads = K.assemble([K.k_pre, K.k_ln1, K.k_qkv, K.k_chain, K.k_att, K.k_wo, K.k_ln2, K.k_mlp1, K.k_mlp2], header=hdr)
open(sys.argv[1], 'w').write(txt)
print("lines", txt.count('\n'), "pads", pads, "bytes", len(txt))
```

```python
from asm import *
from layout import *

LDS_WO = 0
LDS_M = 81920
LDS_Q = 97280
LDS_VM = 101376
LDS_K = 114688
LDS_V = 131072
RAW_WO = 81920
LDS_DUMMY = 139264
RS_SLOT = 0x100000
PG_SLOT = 0x20000
AG_SLOT = 0x8000

DBG_TICKET = 0
DBG_OTHER = 8
DBG_INIT = 9

S_WS = 4
S_T0 = 8
S_T1 = 12
S_T2 = 16
S_T3 = 20
S_DBG = 24
S_W, S_X, S_C, S_H, S_HF = 26, 27, 28, 29, 30
S_STEP, S_FAST = 31, 32
S_AGO, S_RSS, S_RSL, S_RSL1, S_PGP = 33, 34, 35, 36, 37
S_KO, S_VO, S_KMO = 38, 39, 40
S_A, S_B, S_C2, S_D = 41, 42, 43, 44
S_SPIN = 45
S_TS = 46
S_TSO = 48
S_ISRED, S_UNIT, S_TAG, S_PAR = 56, 57, 58, 59
S_AGS, S_AGR = 54, 55
S_MK, S_MV = 76, 77
S_KB = 49

V_AG, V_LMW, V_LMR, V_IDX, V_QW, V_QR, V_KR, V_VR = 0, 1, 2, 3, 4, 5, 6, 7
V_VMW, V_WOR, V_RSS, V_RSL0, V_RSL2, V_PGP, V_KD0, V_KD1 = 8, 9, 10, 11, 12, 13, 14, 15
V_VD, V_KMS, V_VMS, V_VMR = 16, 17, 18, 19
V_AG2, V_LMW2, V_AGS, V_WK = 20, 21, 22, 23
V_WV = 12
V_SELR, V_ONE, V_HALF = 24, 28, 32
RA = 34
RB = 74
RC = 94

def wreg(tile, ks):
    idx = tile * 10 + ks
    return a(idx * 8, 8) if idx < 32 else v(112 + (idx - 32) * 8, 8)
def wreg_half(tile, ks, pair):
    idx = tile * 10 + ks
    return a(idx * 8 + pair * 2, 2) if idx < 32 else v(112 + (idx - 32) * 8 + pair * 2, 2)

def srd(A, dst, karg, nbytes, tmp):
    A(f"s_load_dwordx2 {s(dst,2)}, s[0:1], {karg}")

def srd_fin(A, dst, nbytes):
    A(f"s_and_b32 {s(dst+1)}, {s(dst+1)}, 0xffff")
    A(f"s_mov_b32 {s(dst+2)}, {nbytes}")
    A(f"s_mov_b32 {s(dst+3)}, {SRD3:#x}")

NTS = 16
S_TSV = 60

def ts(A, slot, on):
    if not on:
        return
    A("s_waitcnt lgkmcnt(0)")
    A(f"s_memtime {s(S_TS,2)}")
    A("s_waitcnt lgkmcnt(0)")
    A(f"s_mov_b32 {s(S_TSV+slot)}, {s(S_TS)}")

def ts_flush(A, on, tmp):
    if not on:
        return
    A(f"v_mov_b32 {v(tmp+1)}, {s(S_TSO)}")
    for i in range(NTS):
        A(f"v_mov_b32 {v(tmp)}, {s(S_TSV+i)}")
        A(f"buffer_store_dword {v(tmp)}, {v(tmp+1)}, {s(S_WS,4)}, 0 offen offset:{i*4}")
        A("s_nop 0")

class Lds:
    def __init__(self, A):
        self.A = A; self.ops = []
    def op(self, text, tag=None):
        self.A(text); self.ops.append(tag)
    def wait(self, tag):
        idx = max(i for i, t in enumerate(self.ops) if t == tag)
        n = len(self.ops) - 1 - idx
        self.A(f"s_waitcnt lgkmcnt({min(n, 15)})")
        if n <= 15:
            self.ops = [None if i <= idx else t for i, t in enumerate(self.ops)]
    def drain(self):
        self.A("s_waitcnt lgkmcnt(0)"); self.ops = []

def poll(A, loads, regs, fill=None, pre=0):
    W = A.newlabel('pollw'); D = A.newlabel('polled')
    t = RC + 17
    for _ in range(pre):
        A("s_nop 15")
    for ld in loads:
        A(ld)
    A(f"s_mov_b32 {s(S_SPIN)}, 0x100000")
    if fill:
        fill()
    A.label(W)
    A("s_waitcnt vmcnt(0)")
    A(f"v_max3_u32 {v(t)}, {v(regs[0])}, {v(regs[1])}, {v(regs[2])}")
    rest = regs[3:]
    while len(rest) >= 2:
        A(f"v_max3_u32 {v(t)}, {v(t)}, {v(rest[0])}, {v(rest[1])}")
        rest = rest[2:]
    if rest:
        A(f"v_max_u32 {v(t)}, {v(t)}, {v(rest[0])}")
    A(f"v_cmp_eq_u32 vcc, -1, {v(t)}")
    A(f"s_cbranch_vccz {D}")
    for ld in loads:
        A(ld)
    A(f"s_sub_u32 {s(S_SPIN)}, {s(S_SPIN)}, 1")
    A(f"s_cbranch_scc0 {W}")
    A("s_waitcnt vmcnt(0)")
    A.label(D)

def gen_roles(A, exit_label):
    A(f"s_load_dwordx2 {s(S_DBG,2)}, s[0:1], {KA['dbg']}")
    A(f"s_load_dwordx2 {s(S_WS,2)}, s[0:1], {KA['ws']}")
    A(f"s_getreg_b32 {s(S_X)}, hwreg(HW_REG_XCC_ID, 0, 4)")
    A(f"v_lshrrev_b32 v1, 6, v0")
    A(f"v_readfirstlane_b32 {s(S_W)}, v1")
    A(f"s_and_b32 {s(S_X)}, {s(S_X)}, 7")
    A("s_waitcnt lgkmcnt(0)")
    srd_fin(A, S_WS, WS_BYTES)
    Lw = A.newlabel('role_wait'); Lp = A.newlabel('role_pub'); Lov = A.newlabel('role_over')
    A(f"s_cmp_lg_u32 {s(S_W)}, 0")
    A(f"s_cbranch_scc1 {Lw}")
    A(f"s_lshl_b32 {s(S_A)}, {s(S_X)}, 2")
    A(f"v_mov_b32 v1, {s(S_A)}")
    A("v_mov_b32 v12, 1")
    A("s_mov_b64 exec, 1")
    A(f"global_atomic_add v3, v1, v12, {s(S_DBG,2)} sc0")
    A("s_waitcnt vmcnt(0)")
    A(f"v_readfirstlane_b32 {s(S_A)}, v3")
    A(f"s_cmp_ge_u32 {s(S_A)}, 32")
    A(f"s_cbranch_scc1 {Lov}")
    A(f"s_lshl_b32 {s(S_B)}, {s(S_X)}, 5")
    A(f"s_add_u32 {s(S_A)}, {s(S_A)}, {s(S_B)}")
    A(f"s_branch {Lp}")
    A.label(Lov)
    A(f"v_mov_b32 v1, {DBG_OTHER*4}")
    A(f"global_atomic_add v3, v1, v12, {s(S_DBG,2)} sc0")
    A("s_waitcnt vmcnt(0)")
    A(f"v_readfirstlane_b32 {s(S_D)}, v3")
    wait_all_tickets(A)
    Lf = A.newlabel('role_found')
    for x in range(8):
        A(f"v_readfirstlane_b32 {s(S_B)}, v{2+x}")
        A(f"s_min_u32 {s(S_B)}, {s(S_B)}, 32")
        A(f"s_sub_u32 {s(S_C2)}, 32, {s(S_B)}")
        A(f"s_add_u32 {s(S_A)}, {s(S_B)}, {s(S_D)}")
        A(f"s_add_u32 {s(S_A)}, {s(S_A)}, {32*x}")
        A(f"s_cmp_lt_u32 {s(S_D)}, {s(S_C2)}")
        A(f"s_cbranch_scc1 {Lf}")
        A(f"s_sub_u32 {s(S_D)}, {s(S_D)}, {s(S_C2)}")
    A.label(Lf)
    A.label(Lp)
    A("s_mov_b64 exec, -1")
    A(f"v_mov_b32 v1, 163836")
    A(f"v_mov_b32 v2, {s(S_A)}")
    A("ds_write_b32 v1, v2")
    A("s_waitcnt lgkmcnt(0)")
    A.label(Lw)
    A("s_barrier")
    A(f"v_mov_b32 v1, 163836")
    A("ds_read_b32 v2, v1")
    A("s_waitcnt lgkmcnt(0)")
    A(f"v_readfirstlane_b32 {s(S_A)}, v2")
    A("s_barrier")
    A(f"s_sub_u32 {s(S_C)}, {s(S_A)}, 64")
    A(f"s_cmp_ge_u32 {s(S_A)}, 64")
    A(f"s_cbranch_scc1 {exit_label}")
    A(f"s_lshr_b32 {s(S_X)}, {s(S_A)}, 5")
    A(f"s_and_b32 {s(S_C)}, {s(S_A)}, 31")

def wait_all_tickets(A, b=2):
    L = A.newlabel('tick'); D = A.newlabel('tickd')
    A(f"s_mov_b32 {s(S_SPIN)}, 0x100000")
    A(f"v_mov_b32 {v(b+9)}, 0")
    A.label(L)
    A(f"global_load_dwordx4 {v(b,4)}, {v(b+9)}, {s(S_DBG,2)} sc1")
    A(f"global_load_dwordx4 {v(b+4,4)}, {v(b+9)}, {s(S_DBG,2)} offset:16 sc1")
    A("s_waitcnt vmcnt(0)")
    A(f"v_add3_u32 {v(b+8)}, {v(b)}, {v(b+1)}, {v(b+2)}")
    A(f"v_add3_u32 {v(b+8)}, {v(b+8)}, {v(b+3)}, {v(b+4)}")
    A(f"v_add3_u32 {v(b+8)}, {v(b+8)}, {v(b+5)}, {v(b+6)}")
    A(f"v_add_u32 {v(b+8)}, {v(b+8)}, {v(b+7)}")
    A(f"v_readfirstlane_b32 {s(S_B)}, {v(b+8)}")
    A(f"s_cmp_ge_u32 {s(S_B)}, 256")
    A(f"s_cbranch_scc1 {D}")
    A("s_sleep 4")
    A(f"s_sub_u32 {s(S_SPIN)}, {s(S_SPIN)}, 1")
    A(f"s_cbranch_scc0 {L}")
    A.label(D)
    A(f"v_readfirstlane_b32 {s(S_B)}, {v(b)}")
    A(f"v_readfirstlane_b32 {s(S_C2)}, {v(b+1)}")

def wait_cnt(A, soff, target, t, srd=S_WS, spin=S_SPIN, tmp=S_A, slp=2):
    L = A.newlabel('cw'); D = A.newlabel('cd')
    A(f"s_mov_b32 {s(spin)}, 0x200000")
    A(f"v_mov_b32 {v(t)}, 0")
    A.label(L)
    A(f"buffer_load_dword {v(t+1)}, {v(t)}, {s(srd,4)}, {s(soff)} offen sc1")
    A("s_waitcnt vmcnt(0)")
    A(f"v_readfirstlane_b32 {s(tmp)}, {v(t+1)}")
    A(f"s_cmp_ge_u32 {s(tmp)}, {target}")
    A(f"s_cbranch_scc1 {D}")
    A(f"s_sleep {slp}")
    A(f"s_sub_u32 {s(spin)}, {s(spin)}, 1")
    A(f"s_cbranch_scc0 {L}")
    A.label(D)

def signal_cnt(A, soff, t, srd=S_WS):
    A(f"v_mov_b32 {v(t)}, 0")
    A(f"v_mov_b32 {v(t+1)}, 1")
    A("s_mov_b64 exec, 1")
    A(f"buffer_atomic_add {v(t+1)}, {v(t)}, {s(srd,4)}, {s(soff)} offen")
    A("s_mov_b64 exec, -1")

def gen_prologue(A, tson):
    T = RA
    A("v_mov_b32 v110, v0")
    lane, n, g, t0, t1, t2, t3 = T, T+1, T+2, T+3, T+4, T+5, T+6
    A(f"s_lshr_b32 {s(S_H)}, {s(S_C)}, 1")
    A(f"s_lshl_b32 {s(S_A)}, {s(S_X)}, 4")
    A(f"s_add_u32 {s(S_H)}, {s(S_H)}, {s(S_A)}")
    A(f"s_and_b32 {s(S_HF)}, {s(S_C)}, 1")
    for d, k in ((S_T0, 'Wq'), (S_T1, 'Wk'), (S_T2, 'Wv'), (S_T3, 'Wo')):
        A(f"s_load_dwordx2 {s(d,2)}, s[0:1], {KA[k]}")
    A(f"v_and_b32 {v(lane)}, 63, v110")
    A(f"v_and_b32 {v(n)}, 15, {v(lane)}")
    A(f"v_lshrrev_b32 {v(g)}, 4, {v(lane)}")
    for i in range(4):
        A(f"v_mov_b32 {v(RB+i)}, -1")
    A(f"s_lshl_b32 {s(S_D)}, {s(S_X)}, 5")
    A(f"s_add_u32 {s(S_D)}, {s(S_D)}, {s(S_C)}")
    A(f"v_lshlrev_b32 {v(t0)}, 4, {v(lane)}")
    A(f"s_mul_i32 {s(S_A)}, {s(S_C)}, 20480")
    A(f"s_mul_i32 {s(S_B)}, {s(S_W)}, 5120")
    A(f"s_add_u32 {s(S_A)}, {s(S_A)}, {s(S_B)}")
    A(f"s_lshl_b32 {s(S_B)}, {s(S_X)}, 20")
    A(f"s_add_u32 {s(S_A)}, {s(S_A)}, {s(S_B)}")
    A(f"s_add_u32 {s(S_A)}, {s(S_A)}, {WS_RS}")
    for i in range(5):
        A(f"buffer_store_dwordx4 {v(RB,4)}, {v(t0)}, {s(S_WS,4)}, {s(S_A)} offen sc1")
        A(f"s_add_u32 {s(S_A)}, {s(S_A)}, 1024")
    A(f"s_lshl_b32 {s(S_A)}, {s(S_D)}, 12")
    A(f"s_lshl_b32 {s(S_B)}, {s(S_W)}, 10")
    A(f"s_add_u32 {s(S_A)}, {s(S_A)}, {s(S_B)}")
    A(f"s_add_u32 {s(S_A)}, {s(S_A)}, {WS_PG}")
    A(f"buffer_store_dwordx4 {v(RB,4)}, {v(t0)}, {s(S_WS,4)}, {s(S_A)} offen sc1")
    A(f"s_lshl_b32 {s(S_A)}, {s(S_D)}, 10")
    A(f"s_lshl_b32 {s(S_B)}, {s(S_W)}, 8")
    A(f"s_add_u32 {s(S_A)}, {s(S_A)}, {s(S_B)}")
    A(f"s_add_u32 {s(S_A)}, {s(S_A)}, {WS_AGB}")
    A(f"v_mov_b32 {v(t1)}, {INVALID:#x}")
    A(f"v_cmp_gt_u32 vcc, 16, {v(lane)}")
    A(f"v_cndmask_b32 {v(t1)}, {v(t1)}, {v(t0)}, vcc")
    A(f"buffer_store_dwordx4 {v(RB,4)}, {v(t1)}, {s(S_WS,4)}, {s(S_A)} offen sc1")
    A("s_waitcnt lgkmcnt(0)")
    for d in (S_T0, S_T1, S_T2, S_T3):
        srd_fin(A, d, 640 * 4096 * 2)
    A(f"s_lshl_b32 {s(S_A)}, {s(S_H)}, 1")
    A(f"s_add_u32 {s(S_A)}, {s(S_A)}, {s(S_HF)}")
    A(f"s_mul_i32 {s(S_A)}, {s(S_A)}, 81920")
    A(f"s_mul_i32 {s(S_B)}, {s(S_W)}, 20480")
    A(f"s_add_u32 {s(S_A)}, {s(S_A)}, {s(S_B)}")
    A(f"s_add_u32 {s(S_B)}, {s(S_B)}, {RAW_WO}")
    for i in range(20):
        A(f"s_mov_b32 m0, {s(S_B)}")
        A(f"s_add_u32 {s(S_B)}, {s(S_B)}, 1024")
        A(f"buffer_load_dwordx4 {v(t0)}, {s(S_T3,4)}, {s(S_A)} offen lds")
        A(f"s_add_u32 {s(S_A)}, {s(S_A)}, 1024")
    QD0, QD1, VD0, VD1, QR0, QR1, VR0 = T+8, T+9, T+10, T+11, T+12, T+13, T+14
    A(f"v_lshlrev_b32 {v(t1)}, 1, {v(g)}")
    A(f"v_xor_b32 {v(t2)}, {v(n)}, {v(t1)}")
    A(f"v_lshlrev_b32 {v(t2)}, 4, {v(t2)}")
    A(f"v_lshl_add_u32 {v(QD0)}, {v(g)}, 13, {v(t2)}")
    A(f"v_xor_b32 {v(QD1)}, 128, {v(QD0)}")
    A(f"s_lshl_b32 {s(S_A)}, {s(S_H)}, 8")
    A(f"s_lshl_b32 {s(S_B)}, {s(S_W)}, 17")
    A(f"s_add_u32 {s(S_A)}, {s(S_A)}, {s(S_B)}")
    A(f"v_add_u32 {v(QD0)}, {s(S_A)}, {v(QD0)}")
    A(f"v_add_u32 {v(QD1)}, {s(S_A)}, {v(QD1)}")
    A(f"v_and_b32 {v(t1)}, 7, {v(lane)}")
    A(f"v_and_b32 {v(t2)}, 1, {v(g)}")
    A(f"v_lshlrev_b32 {v(t2)}, 1, {v(t2)}")
    A(f"v_xor_b32 {v(t1)}, {v(t1)}, {v(t2)}")
    A(f"v_lshlrev_b32 {v(t1)}, 4, {v(t1)}")
    A(f"v_lshrrev_b32 {v(t2)}, 3, {v(lane)}")
    A(f"v_lshl_add_u32 {v(VD0)}, {v(t2)}, 13, {v(t1)}")
    A(f"v_xor_b32 {v(VD1)}, 64, {v(VD0)}")
    A(f"s_lshl_b32 {s(S_B)}, {s(S_HF)}, 7")
    A(f"s_add_u32 {s(S_A)}, {s(S_A)}, {s(S_B)}")
    A(f"v_add_u32 {v(VD0)}, {s(S_A)}, {v(VD0)}")
    A(f"v_add_u32 {v(VD1)}, {s(S_A)}, {v(VD1)}")
    rr, cc = T+15, T+16
    A(f"v_lshrrev_b32 {v(rr)}, 2, {v(n)}")
    A(f"v_and_b32 {v(cc)}, 3, {v(n)}")
    A(f"v_and_b32 {v(t1)}, 1, {v(g)}")
    A(f"v_lshl_add_u32 {v(t1)}, {v(t1)}, 2, {v(rr)}")
    A(f"v_lshlrev_b32 {v(t1)}, 1, {v(t1)}")
    A(f"v_lshrrev_b32 {v(t2)}, 1, {v(cc)}")
    A(f"v_xor_b32 {v(t1)}, {v(t1)}, {v(t2)}")
    A(f"v_lshlrev_b32 {v(t1)}, 4, {v(t1)}")
    A(f"v_and_b32 {v(t2)}, 1, {v(cc)}")
    A(f"v_lshl_add_u32 {v(t1)}, {v(t2)}, 3, {v(t1)}")
    A(f"v_lshl_add_u32 {v(t2)}, {v(g)}, 3, {v(rr)}")
    A(f"v_lshl_add_u32 {v(t1)}, {v(t2)}, 8, {v(t1)}")
    A(f"s_lshl_b32 {s(S_A)}, {s(S_W)}, 6")
    A(f"v_xor_b32 {v(QR0)}, {s(S_A)}, {v(t1)}")
    A(f"v_xor_b32 {v(QR1)}, 32, {v(QR0)}")
    A(f"v_and_b32 {v(t1)}, 1, {v(g)}")
    A(f"v_lshlrev_b32 {v(t1)}, 1, {v(t1)}")
    A(f"v_lshrrev_b32 {v(t3)}, 1, {v(rr)}")
    A(f"v_add_u32 {v(t1)}, {v(t1)}, {v(t3)}")
    A(f"v_lshlrev_b32 {v(t1)}, 1, {v(t1)}")
    A(f"v_lshrrev_b32 {v(t3)}, 1, {v(cc)}")
    A(f"v_xor_b32 {v(t1)}, {v(t1)}, {v(t3)}")
    A(f"v_lshlrev_b32 {v(t1)}, 4, {v(t1)}")
    A(f"v_and_b32 {v(t3)}, 1, {v(cc)}")
    A(f"v_lshl_add_u32 {v(t1)}, {v(t3)}, 3, {v(t1)}")
    A(f"v_lshl_add_u32 {v(t1)}, {v(t2)}, 7, {v(t1)}")
    A(f"s_lshl_b32 {s(S_A)}, {s(S_W)}, 5")
    A(f"v_xor_b32 {v(VR0)}, {s(S_A)}, {v(t1)}")
    A(f"v_add_u32 {v(VR0)}, 32768, {v(VR0)}")

    def issue_stage(ks):
        sb = (ks & 1) * 40960
        A(f"s_lshl_b32 {s(S_B)}, {s(S_W)}, 12")
        for mat, (sr, off) in enumerate(((S_T0, 0), (S_T1, 16384))):
            for ii in range(4):
                A(f"s_add_u32 m0, {s(S_B)}, {sb + off + ii*1024}")
                A(f"s_mov_b32 {s(S_A)}, {(ks*64 + 4*ii) * 8192}")
                A(f"buffer_load_dwordx4 {v(QD0 if ii < 2 else QD1)}, {s(sr,4)}, {s(S_A)} offen lds")
        A(f"s_lshl_b32 {s(S_B)}, {s(S_W)}, 11")
        for i in range(2):
            A(f"s_add_u32 m0, {s(S_B)}, {sb + 32768 + i*1024}")
            A(f"s_mov_b32 {s(S_A)}, {(ks*64 + 8*i) * 8192}")
            A(f"buffer_load_dwordx4 {v(VD0 if i == 0 else VD1)}, {s(S_T2,4)}, {s(S_A)} offen lds")
    issue_stage(0)
    issue_stage(1)
    ad0, ad1, ad2 = T+17, T+18, T+19
    for ks in range(10):
        sb = (ks & 1) * 40960
        A(f"s_waitcnt vmcnt({10 if ks < 9 else 0})")
        A("s_barrier")
        if ks == 0:
            La = A.newlabel('arr')
            A(f"s_cmp_lg_u32 {s(S_W)}, 0")
            A(f"s_cbranch_scc1 {La}")
            A(f"v_mov_b32 {v(t1)}, {DBG_INIT*4}")
            A(f"v_mov_b32 {v(t2)}, 1")
            A("s_mov_b64 exec, 1")
            A(f"global_atomic_add {v(t1)}, {v(t2)}, {s(S_DBG,2)}")
            A("s_mov_b64 exec, -1")
            A.label(La)
        A(f"v_add_u32 {v(ad0)}, {sb}, {v(QR0)}")
        A(f"v_add_u32 {v(ad1)}, {sb}, {v(QR1)}")
        A(f"v_add_u32 {v(ad2)}, {sb}, {v(VR0)}")
        for mat in range(2):
            for tt in range(2):
                tile = mat * 2 + tt
                for hb in range(2):
                    for q in range(2):
                        A(f"ds_read_b64_tr_b16 {wreg_half(tile, ks, hb*2+q)}, {v(ad0 if tt == 0 else ad1)} offset:{mat*16384 + hb*8192 + q*1024}")
        for hb in range(2):
            for q in range(2):
                A(f"ds_read_b64_tr_b16 {wreg_half(4, ks, hb*2+q)}, {v(ad2)} offset:{hb*4096 + q*512}")
        A("s_waitcnt lgkmcnt(0)")
        if ks + 2 < 10:
            A("s_barrier")
            issue_stage(ks + 2)
    A("s_barrier")
    A(f"v_lshl_add_u32 {v(t1)}, {v(g)}, 2, {v(rr)}")
    A(f"s_movk_i32 {s(S_A)}, 1280")
    A(f"v_mul_lo_u32 {v(t1)}, {v(t1)}, {s(S_A)}")
    A(f"v_lshl_add_u32 {v(t1)}, {v(cc)}, 3, {v(t1)}")
    A(f"s_mul_i32 {s(S_A)}, {s(S_W)}, 320")
    A(f"s_add_u32 {s(S_A)}, {s(S_A)}, {RAW_WO}")
    A(f"v_add_u32 {v(t1)}, {s(S_A)}, {v(t1)}")
    A(f"s_mul_i32 {s(S_A)}, {s(S_W)}, 20480")
    A(f"v_lshlrev_b32 {v(V_WOR)}, 4, {v(lane)}")
    A(f"v_add_u32 {v(V_WOR)}, {s(S_A)}, {v(V_WOR)}")
    A(f"v_add_u32 {v(t2)}, {32*1280}, {v(t1)}")
    buf = RB
    for tt in range(10):
        for kk in range(2):
            ad = t1 if kk == 0 else t2
            b = buf + kk * 4
            A(f"ds_read_b64_tr_b16 {v(b,2)}, {v(ad)} offset:{tt*32}")
            A(f"ds_read_b64_tr_b16 {v(b+2,2)}, {v(ad)} offset:{tt*32 + 16*1280}")
        A("s_waitcnt lgkmcnt(0)")
        for kk in range(2):
            A(f"ds_write_b128 {v(V_WOR)}, {v(buf+kk*4,4)} offset:{tt*2048 + kk*1024}")
        A("s_waitcnt lgkmcnt(0)")
    A("s_barrier")
    g1, g2 = T+20, T+21
    A(f"v_and_b32 {v(g1)}, 1, {v(g)}")
    A(f"v_lshrrev_b32 {v(g2)}, 1, {v(g)}")
    A(f"s_mul_i32 {s(S_A)}, {s(S_W)}, 160")
    A(f"v_lshl_add_u32 {v(t1)}, {v(g)}, 4, {v(n)}")
    A(f"v_add_u32 {v(t1)}, {s(S_A)}, {v(t1)}")
    A(f"v_lshrrev_b32 {v(t2)}, 3, {v(t1)}")
    A(f"v_lshlrev_b32 {v(t2)}, 12, {v(t2)}")
    A(f"v_and_b32 {v(t3)}, 7, {v(t1)}")
    A(f"v_lshl_add_u32 {v(t2)}, {v(t3)}, 4, {v(t2)}")
    A(f"s_lshl_b32 {s(S_B)}, {s(S_C)}, 7")
    A(f"v_add_u32 {v(t2)}, {s(S_B)}, {v(t2)}")
    A(f"v_mov_b32 {v(T+22)}, {INVALID:#x}")
    A(f"v_cmp_gt_u32 vcc, 2, {v(g)}")
    A(f"v_cndmask_b32 {v(V_RSS)}, {v(T+22)}, {v(t2)}, vcc")
    A(f"v_add_u32 {v(t1)}, {s(S_A)}, {v(lane)}")
    A(f"v_lshlrev_b32 {v(V_AG)}, 4, {v(t1)}")
    A(f"v_mov_b32 {v(T+22)}, {INVALID:#x}")
    A(f"v_cmp_gt_u32 vcc, 32, {v(lane)}")
    A(f"v_cndmask_b32 {v(V_AG2)}, {v(T+22)}, {v(V_AG)}, vcc")
    A(f"s_mul_i32 {s(S_A)}, {s(S_W)}, 3840")
    A(f"s_add_u32 {s(S_A)}, {s(S_A)}, {LDS_M}")
    A(f"s_movk_i32 {s(S_B)}, 384")
    A(f"v_mul_lo_u32 {v(t3)}, {v(g)}, {s(S_B)}")
    A(f"v_lshl_add_u32 {v(t3)}, {v(n)}, 4, {v(t3)}")
    A(f"v_add_u32 {v(V_LMW)}, {s(S_A)}, {v(t3)}")
    A(f"v_lshlrev_b32 {v(t3)}, 4, {v(lane)}")
    A(f"v_add_u32 {v(t3)}, {LDS_DUMMY - 3072}, {v(t3)}")
    A(f"v_cndmask_b32 {v(V_LMW2)}, {v(t3)}, {v(V_LMW)}, vcc")
    A(f"v_mul_lo_u32 {v(t3)}, {v(g)}, {s(S_B)}")
    A(f"v_lshrrev_b32 {v(t2)}, 1, {v(rr)}")
    A(f"v_lshl_add_u32 {v(t3)}, {v(t2)}, 6, {v(t3)}")
    A(f"v_lshrrev_b32 {v(t2)}, 1, {v(cc)}")
    A(f"v_lshl_add_u32 {v(t3)}, {v(t2)}, 5, {v(t3)}")
    A(f"v_and_b32 {v(t2)}, 1, {v(rr)}")
    A(f"v_lshl_add_u32 {v(t3)}, {v(t2)}, 4, {v(t3)}")
    A(f"v_and_b32 {v(t2)}, 1, {v(cc)}")
    A(f"v_lshl_add_u32 {v(t3)}, {v(t2)}, 3, {v(t3)}")
    A(f"v_add_u32 {v(V_LMR)}, {LDS_M}, {v(t3)}")
    A(f"v_mov_b32 {v(t2)}, 0x4444")
    A(f"v_mov_b32 {v(t3)}, 0xeeee")
    A(f"v_cmp_gt_u32 vcc, 8, {v(n)}")
    A(f"v_cndmask_b32 {v(V_IDX)}, {v(t3)}, {v(t2)}, vcc")
    A(f"s_lshl_b32 {s(S_A)}, {s(S_W)}, 9")
    A(f"s_add_u32 {s(S_A)}, {s(S_A)}, {LDS_Q}")
    A(f"v_lshl_add_u32 {v(t2)}, {v(g2)}, 4, {v(n)}")
    A(f"v_lshlrev_b32 {v(t2)}, 4, {v(t2)}")
    A(f"v_lshl_add_u32 {v(t2)}, {v(g1)}, 3, {v(t2)}")
    A(f"v_add_u32 {v(V_QW)}, {s(S_A)}, {v(t2)}")
    A(f"v_lshl_add_u32 {v(t2)}, {v(g)}, 3, {v(rr)}")
    A(f"v_lshlrev_b32 {v(t2)}, 4, {v(t2)}")
    A(f"v_and_b32 {v(t3)}, 1, {v(cc)}")
    A(f"v_lshl_add_u32 {v(t2)}, {v(t3)}, 3, {v(t2)}")
    A(f"v_add_u32 {v(V_QR)}, {LDS_Q}, {v(t2)}")
    A(f"v_xor_b32 {v(t2)}, {v(g)}, {v(n)}")
    A(f"v_lshlrev_b32 {v(t2)}, 4, {v(t2)}")
    A(f"v_lshl_add_u32 {v(t2)}, {v(n)}, 8, {v(t2)}")
    A(f"v_add_u32 {v(V_KR)}, {LDS_K}, {v(t2)}")
    A(f"v_lshl_add_u32 {v(t2)}, {v(g)}, 2, {v(rr)}")
    A(f"v_and_b32 {v(t3)}, 6, {v(t2)}")
    A(f"v_lshrrev_b32 {v(t1)}, 1, {v(cc)}")
    A(f"v_xor_b32 {v(t3)}, {v(t3)}, {v(t1)}")
    A(f"v_lshlrev_b32 {v(t3)}, 4, {v(t3)}")
    A(f"v_lshl_add_u32 {v(t3)}, {v(t2)}, 7, {v(t3)}")
    A(f"v_and_b32 {v(t1)}, 1, {v(cc)}")
    A(f"v_lshl_add_u32 {v(t3)}, {v(t1)}, 3, {v(t3)}")
    A(f"v_add_u32 {v(V_VR)}, {LDS_V}, {v(t3)}")
    A(f"v_lshlrev_b32 {v(t2)}, 3, {v(lane)}")
    A(f"v_add_u32 {v(V_VMR)}, {LDS_VM}, {v(t2)}")
    A(f"s_lshl_b32 {s(S_A)}, {s(S_W)}, 9")
    A(f"v_add_u32 {v(V_VMW)}, {s(S_A)}, {v(V_VMR)}")
    A(f"s_lshl_b32 {s(S_A)}, {s(S_W)}, 5")
    A(f"s_add_u32 {s(S_UNIT)}, {s(S_A)}, {s(S_C)}")
    A(f"s_cmp_lt_u32 {s(S_UNIT)}, 80")
    A(f"s_cselect_b32 {s(S_ISRED)}, 1, 0")
    A(f"s_min_u32 {s(S_UNIT)}, {s(S_UNIT)}, 79")
    A(f"v_lshrrev_b32 {v(t1)}, 3, {v(n)}")
    A(f"v_lshl_add_u32 {v(t1)}, {v(t1)}, 2, {v(g)}")
    A(f"v_lshlrev_b32 {v(t1)}, 7, {v(t1)}")
    A(f"v_and_b32 {v(t2)}, 7, {v(n)}")
    A(f"v_lshl_add_u32 {v(t1)}, {v(t2)}, 4, {v(t1)}")
    A(f"s_lshl_b32 {s(S_A)}, {s(S_UNIT)}, 12")
    A(f"v_add_u32 {v(V_RSL0)}, {s(S_A)}, {v(t1)}")
    A(f"s_lshr_b32 {s(S_A)}, {s(S_UNIT)}, 5")
    A(f"s_lshl_b32 {s(S_A)}, {s(S_A)}, 14")
    A(f"s_and_b32 {s(S_B)}, {s(S_UNIT)}, 31")
    A(f"s_lshl_b32 {s(S_B)}, {s(S_B)}, 8")
    A(f"s_add_u32 {s(S_A)}, {s(S_A)}, {s(S_B)}")
    A(f"v_lshlrev_b32 {v(t1)}, 7, {v(g)}")
    A(f"v_lshl_add_u32 {v(t1)}, {v(n)}, 4, {v(t1)}")
    A(f"v_add_u32 {v(t1)}, {s(S_A)}, {v(t1)}")
    A(f"v_cmp_gt_u32 vcc, 8, {v(n)}")
    A(f"v_cndmask_b32 {v(t1)}, {v(T+22)}, {v(t1)}, vcc")
    A(f"v_cmp_gt_u32 vcc, 2, {v(g)}")
    A(f"v_cndmask_b32 {v(V_PGP)}, {v(T+22)}, {v(t1)}, vcc")
    A(f"s_lshl_b32 {s(S_A)}, {s(S_UNIT)}, 7")
    A(f"v_lshlrev_b32 {v(t1)}, 4, {v(lane)}")
    A(f"v_add_u32 {v(t1)}, {s(S_A)}, {v(t1)}")
    A(f"v_cmp_gt_u32 vcc, 8, {v(lane)}")
    A(f"v_cndmask_b32 {v(V_AGS)}, {v(T+22)}, {v(t1)}, vcc")
    A(f"s_lshl_b32 {s(S_A)}, {s(S_W)}, 3")
    for ii, dst in ((0, V_KD0), (1, V_KD1)):
        A(f"v_add_u32 {v(t1)}, {s(S_A)}, {v(g)}")
        if ii:
            A(f"v_add_u32 {v(t1)}, 4, {v(t1)}")
        A(f"v_and_b32 {v(t2)}, 15, {v(t1)}")
        A(f"v_xor_b32 {v(t2)}, {v(t2)}, {v(n)}")
        A(f"v_lshlrev_b32 {v(t2)}, 4, {v(t2)}")
        A(f"v_lshl_add_u32 {v(dst)}, {v(t1)}, 13, {v(t2)}")
    A(f"s_lshl_b32 {s(S_B)}, {s(S_H)}, 8")
    A(f"v_add_u32 {v(V_KD0)}, {s(S_B)}, {v(V_KD0)}")
    A(f"v_add_u32 {v(V_KD1)}, {s(S_B)}, {v(V_KD1)}")
    A(f"v_lshrrev_b32 {v(t1)}, 3, {v(lane)}")
    A(f"v_add_u32 {v(t1)}, {s(S_A)}, {v(t1)}")
    A(f"v_and_b32 {v(t2)}, 6, {v(t1)}")
    A(f"v_and_b32 {v(t3)}, 7, {v(lane)}")
    A(f"v_xor_b32 {v(t2)}, {v(t2)}, {v(t3)}")
    A(f"v_lshlrev_b32 {v(t2)}, 4, {v(t2)}")
    A(f"v_lshl_add_u32 {v(V_VD)}, {v(t1)}, 13, {v(t2)}")
    A(f"s_lshl_b32 {s(S_C2)}, {s(S_HF)}, 7")
    A(f"s_add_u32 {s(S_B)}, {s(S_B)}, {s(S_C2)}")
    A(f"v_add_u32 {v(V_VD)}, {s(S_B)}, {v(V_VD)}")
    A(f"s_lshl_b32 {s(S_MK)}, {s(S_W)}, 11")
    A(f"s_add_u32 {s(S_MK)}, {s(S_MK)}, {LDS_K}")
    A(f"s_lshl_b32 {s(S_MV)}, {s(S_W)}, 10")
    A(f"s_add_u32 {s(S_MV)}, {s(S_MV)}, {LDS_V}")
    A(f"v_lshrrev_b32 {v(t1)}, 1, {v(lane)}")
    A(f"v_lshlrev_b32 {v(t1)}, 13, {v(t1)}")
    A(f"v_and_b32 {v(t2)}, 1, {v(lane)}")
    A(f"v_lshl_add_u32 {v(t1)}, {v(t2)}, 7, {v(t1)}")
    A(f"s_lshl_b32 {s(S_B)}, {s(S_H)}, 8")
    A(f"v_add_u32 {v(V_WK)}, {s(S_B)}, {v(t1)}")
    A(f"s_lshl_b32 {s(S_C2)}, {s(S_HF)}, 7")
    A(f"s_add_u32 {s(S_B)}, {s(S_B)}, {s(S_C2)}")
    A(f"v_lshlrev_b32 {v(t1)}, 13, {v(lane)}")
    A(f"v_add_u32 {v(t1)}, {s(S_B)}, {v(t1)}")
    A(f"v_mov_b32 {v(t2)}, {INVALID:#x}")
    A(f"v_cmp_gt_u32 vcc, 32, {v(lane)}")
    A(f"v_cndmask_b32 {v(V_WV)}, {v(t2)}, {v(t1)}, vcc")
    A(f"s_lshl_b32 {s(S_A)}, {s(S_H)}, 11")
    A(f"s_lshl_b32 {s(S_B)}, {s(S_HF)}, 10")
    A(f"s_add_u32 {s(S_A)}, {s(S_A)}, {s(S_B)}")
    A(f"v_lshlrev_b32 {v(t1)}, 4, {v(lane)}")
    A(f"v_add_u32 {v(V_KMS)}, {s(S_A)}, {v(t1)}")
    A(f"v_lshlrev_b32 {v(t1)}, 9, {v(g)}")
    A(f"v_lshl_add_u32 {v(t1)}, {v(n)}, 3, {v(t1)}")
    A(f"v_add_u32 {v(V_VMS)}, {LDS_VM}, {v(t1)}")
    A(f"v_and_b32 {v(t1)}, 7, {v(n)}")
    A(f"v_lshrrev_b32 {v(t2)}, 1, {v(t1)}")
    A(f"v_and_b32 {v(t3)}, 1, {v(t1)}")
    A(f"v_lshlrev_b32 {v(t3)}, 4, {v(t3)}")
    A(f"v_mov_b32 {v(T+23)}, 0x3f80")
    A(f"v_lshlrev_b32 {v(t3)}, {v(t3)}, {v(T+23)}")
    A(f"v_lshrrev_b32 {v(t1)}, 3, {v(n)}")
    for d in range(4):
        A(f"v_cmp_eq_u32 vcc, {d}, {v(t2)}")
        A(f"v_cndmask_b32 {v(T+24)}, 0, {v(t3)}, vcc")
        A(f"v_cmp_eq_u32 vcc, 0, {v(t1)}")
        A(f"v_cndmask_b32 {v(V_SELR+d)}, 0, {v(T+24)}, vcc")
    for d in range(4):
        A(f"v_mov_b32 {v(V_ONE+d)}, 0x3f803f80")
    for d in range(2):
        A(f"v_mov_b32 {v(V_HALF+d)}, 0x3f003f00")
    A(f"s_load_dwordx2 {s(S_T0,2)}, s[0:1], {KA['mem0']}")
    A("s_waitcnt lgkmcnt(0)")
    srd_fin(A, S_T0, 8 * 640 * 2)
    A(f"v_lshrrev_b32 {v(t1)}, 5, v110")
    A(f"v_and_b32 {v(t2)}, 31, v110")
    A(f"v_mul_u32_u24 {v(t2)}, 20, {v(t2)}")
    A(f"v_mul_u32_u24 {v(t3)}, 1280, {v(t1)}")
    A(f"v_lshl_add_u32 {v(t3)}, {v(t2)}, 1, {v(t3)}")
    for j in range(10):
        A(f"buffer_load_dword {v(RB+j)}, {v(t3)}, {s(S_T0,4)}, 0 offen offset:{j*4}")
    A("s_waitcnt vmcnt(0)")
    for j in range(10):
        for hh in range(2):
            A(f"v_add_u32 {v(T+22)}, {2*j+hh}, {v(t2)}")
            A(f"v_lshrrev_b32 {v(T+23)}, 4, {v(T+22)}")
            A(f"v_lshlrev_b32 {v(T+23)}, 7, {v(T+23)}")
            A(f"v_lshl_add_u32 {v(T+23)}, {v(T+22)}, 4, {v(T+23)}")
            A(f"v_lshl_add_u32 {v(T+23)}, {v(t1)}, 1, {v(T+23)}")
            A(f"v_add_u32 {v(T+23)}, {LDS_M}, {v(T+23)}")
            A(f"{'ds_write_b16' if hh == 0 else 'ds_write_b16_d16_hi'} {v(T+23)}, {v(RB+j)}")
    A(f"s_mov_b32 {s(S_STEP)}, 0")
    A(f"s_mov_b32 {s(S_KB)}, 0")
    A(f"s_mov_b32 {s(S_KO)}, {WS_K}")
    A(f"s_mov_b32 {s(S_VO)}, {WS_V}")
    if OPT.get('merged'):
        A(f"s_mov_b32 {s(S_B)}, {cnt_off(CNT_KV, 0)}")
        wait_cnt(A, S_B, 32, RB)
    for d in kv_dma_list():
        for x in d: A(x)
    kv_advance(A)
    A(f"s_mul_i32 {s(S_A)}, {s(S_X)}, {80*4096}")
    A(f"s_add_u32 {s(S_RSL)}, {s(S_A)}, {WS_RS}")
    A(f"v_mov_b32 {v(t1)}, {WS_PAR}")
    A(f"buffer_load_dword {v(t2)}, {v(t1)}, {s(S_WS,4)}, 0 offen")
    A("s_waitcnt vmcnt(0)")
    A(f"v_readfirstlane_b32 {s(S_PAR)}, {v(t2)}")
    A(f"s_and_b32 {s(S_PAR)}, {s(S_PAR)}, 1")
    A(f"s_lshl_b32 {s(S_PAR)}, {s(S_PAR)}, 13")
    A(f"s_mul_i32 {s(S_A)}, {s(S_X)}, {3*16384}")
    A(f"s_add_u32 {s(S_PGP)}, {s(S_A)}, {s(S_PAR)}")
    A(f"s_add_u32 {s(S_PGP)}, {s(S_PGP)}, {WS_PG}")
    A(f"s_sub_u32 {s(S_A)}, {3*16384}, {s(S_A)}")
    A(f"s_add_u32 {s(S_AGO)}, {s(S_A)}, {s(S_PAR)}")
    A(f"s_add_u32 {s(S_AGO)}, {s(S_AGO)}, {WS_PG}")
    A(f"s_mul_i32 {s(S_A)}, {s(S_X)}, 10240")
    A(f"s_add_u32 {s(S_AGR)}, {s(S_A)}, {WS_AGB}")
    A(f"s_xor_b32 {s(S_AGS)}, {s(S_AGR)}, {AG_SLOT}")
    wait_all_tickets(A, RB)
    A(f"s_cmp_eq_u32 {s(S_X)}, 0")
    A(f"s_cselect_b32 {s(S_A)}, {s(S_B)}, {s(S_C2)}")
    A(f"s_cmp_ge_u32 {s(S_A)}, 32")
    A(f"s_cselect_b32 {s(S_FAST)}, 1, 0")
    L = A.newlabel('initw'); D = A.newlabel('initd')
    A(f"s_mov_b32 {s(S_SPIN)}, 0x100000")
    A(f"v_mov_b32 {v(t1)}, {DBG_INIT*4}")
    A.label(L)
    A(f"global_load_dword {v(t2)}, {v(t1)}, {s(S_DBG,2)} sc1")
    A("s_waitcnt vmcnt(0)")
    A(f"v_readfirstlane_b32 {s(S_A)}, {v(t2)}")
    A(f"s_cmp_ge_u32 {s(S_A)}, 64")
    A(f"s_cbranch_scc1 {D}")
    A("s_sleep 2")
    A(f"s_sub_u32 {s(S_SPIN)}, {s(S_SPIN)}, 1")
    A(f"s_cbranch_scc0 {L}")
    A.label(D)
    A("s_waitcnt vmcnt(0) lgkmcnt(0)")
    A("s_barrier")

def kv_dma_list():
    return [[f"s_mov_b32 m0, {s(S_MK)}", "s_nop 0", f"buffer_load_dwordx4 {v(V_KD0)}, {s(S_WS,4)}, {s(S_KO)} offen sc1 lds"],
            [f"s_add_u32 m0, {s(S_MK)}, 1024", "s_nop 0", f"buffer_load_dwordx4 {v(V_KD1)}, {s(S_WS,4)}, {s(S_KO)} offen sc1 lds"],
            [f"s_mov_b32 m0, {s(S_MV)}", "s_nop 0", f"buffer_load_dwordx4 {v(V_VD)}, {s(S_WS,4)}, {s(S_VO)} offen sc1 lds"]]

def kv_advance(A):
    A(f"s_add_u32 {s(S_KO)}, {s(S_KO)}, {32*8192}")
    A(f"s_add_u32 {s(S_VO)}, {s(S_VO)}, {32*8192}")
    A(f"s_xor_b32 {s(S_MK)}, {s(S_MK)}, 8192")
    A(f"s_xor_b32 {s(S_MV)}, {s(S_MV)}, 4096")


SCALE_LOG2E = 0.08838834764831845 * 1.4426950408889634
S_NEGC, S_POSC = 50, 52

KMH = RC

def kmvm_prepare(A, L):
    t = RA
    A(f"v_and_b32 {v(t)}, 0x7f0, {v(V_KMS)}")
    A(f"v_add_u32 {v(t)}, {LDS_Q + 2048}, {v(t)}")
    L.op(f"ds_read_b128 {v(KMH,4)}, {v(t)}", 'km')
    for gq in range(4):
        L.op(f"ds_read_b64 {v(t+8+2*gq,2)}, {v(V_VMS)} offset:{gq*128}", 'vm')
    A(f"s_lshl_b32 {s(S_KMO)}, {s(S_STEP)}, 16")
    A(f"s_add_u32 {s(S_KMO)}, {s(S_KMO)}, {WS_KM}")
    L.wait('vm')
    u = t + 16
    for hq in range(2):
        for j in range(2):
            x, y = t + 8 + 2*hq + j, t + 12 + 2*hq + j
            A(f"v_lshlrev_b32 {v(u)}, 16, {v(x)}")
            A(f"v_and_b32 {v(u+1)}, 0xffff0000, {v(x)}")
            A(f"v_lshlrev_b32 {v(u+2)}, 16, {v(y)}")
            A(f"v_and_b32 {v(u+3)}, 0xffff0000, {v(y)}")
            A(f"v_add_f32 {v(u)}, {v(u)}, {v(u+2)}")
            A(f"v_add_f32 {v(u+1)}, {v(u+1)}, {v(u+3)}")
            A(f"v_cvt_pk_bf16_f32 {v(KMH+4+2*hq+j)}, {v(u)}, {v(u+1)}")

def kmvm_store(A):
    A(f"buffer_store_dwordx4 {v(KMH,4)}, {v(V_KMS)}, {s(S_WS,4)}, {s(S_KMO)} offen sc1")
    A(f"s_add_u32 {s(S_A)}, {s(S_KMO)}, {WS_VM - WS_KM}")
    A(f"buffer_store_dwordx4 {v(KMH+4,4)}, {v(V_KMS)}, {s(S_WS,4)}, {s(S_A)} offen sc1")

OPT = {}

def progress(A, sval, t):
    A(f"s_lshl_b32 {s(S_B)}, {s(S_X)}, 5")
    A(f"s_add_u32 {s(S_B)}, {s(S_B)}, {s(S_C)}")
    A(f"s_lshl_b32 {s(S_B)}, {s(S_B)}, 7")
    A(f"s_add_u32 {s(S_B)}, {s(S_B)}, {cnt_off(CNT_MEM, 0)}")
    A(f"v_mov_b32 {v(t)}, 0")
    A(f"v_mov_b32 {v(t+1)}, {s(sval)}")
    A("s_mov_b64 exec, 1")
    A(f"buffer_store_dword {v(t+1)}, {v(t)}, {s(S_WS,4)}, {s(S_B)} offen sc1")
    A("s_mov_b64 exec, -1")

def tail_side_work(A, L):
    if OPT.get('merged'):
        Ls = A.newlabel('nosig'); Lk = A.newlabel('nokv')
        A(f"s_cmp_eq_u32 {s(S_STEP)}, 0")
        A(f"s_cbranch_scc1 {Ls}")
        A("s_waitcnt vmcnt(0)")
        progress(A, S_STEP, RB + 4)
        A.label(Ls)
    kmvm_prepare(A, L)
    if OPT.get('merged'):
        A(f"s_add_u32 {s(S_C2)}, {s(S_STEP)}, 3")
        A(f"s_and_b32 {s(S_B)}, {s(S_C2)}, 3")
        A(f"s_cmp_lg_u32 {s(S_B)}, 0")
        A(f"s_cbranch_scc1 {Lk}")
        A(f"s_cmp_ge_u32 {s(S_C2)}, 64")
        A(f"s_cbranch_scc1 {Lk}")
        A(f"s_lshr_b32 {s(S_B)}, {s(S_C2)}, 2")
        A(f"s_lshl_b32 {s(S_B)}, {s(S_B)}, 7")
        A(f"s_add_u32 {s(S_B)}, {s(S_B)}, {cnt_off(CNT_KV, 0)}")
        wait_cnt(A, S_B, 32, RB + 4, slp=1)
        A.label(Lk)

def rt_stamp(A, soff_expr_reg, on, vt):
    if not on:
        return
    A("s_memrealtime s[86:87]")
    A("s_waitcnt lgkmcnt(0)")
    A(f"v_mov_b32 {v(vt)}, s86")
    A(f"s_add_u32 s87, {s(soff_expr_reg)}, {WS_TS}")
    A(f"v_mov_b32 {v(vt+1)}, s87")
    A(f"buffer_store_dword {v(vt)}, {v(vt+1)}, s[4:7], 0 offen")

def cut_tail(A, L, Ltop, exit_label):
    L.drain()
    for d in range(20):
        A(f"v_mov_b32 {v(RB+d)}, 0")
    A(f"s_add_u32 {s(S_STEP)}, {s(S_STEP)}, 1")
    A("s_barrier")
    A(f"s_cmp_lt_u32 {s(S_STEP)}, 1000")
    A(f"s_cbranch_scc1 {Ltop}")
    A("s_waitcnt vmcnt(0)")
    A(f"s_branch {exit_label}")

def gen_loop(A, tson, fast, exit_label, nsteps=64):
    sc = '' if fast else ' sc1'
    L = Lds(A)
    mA = RA
    Dq0, Dq1, Dk0, Dk1, Dv = RB, RB+4, RB+8, RB+12, RB+16
    Kx0, Kx1 = RC, RB
    Ltop = A.newlabel('step'); Llast = A.newlabel('last')
    A.label(Ltop)
    if tson:
        A(f"s_lshl_b32 {s(S_A)}, {s(S_STEP)}, 2")
        A(f"s_add_u32 {s(S_A)}, {s(S_A)}, {s(S_W)}")
        A(f"s_lshl_b32 {s(S_A)}, {s(S_A)}, 6")
        A(f"s_add_u32 {s(S_TSO)}, {s(S_A)}, {WS_TS}")
        A(f"s_or_b32 {s(S_A)}, {s(S_X)}, {s(S_C)}")
        A(f"s_cmp_eq_u32 {s(S_A)}, 0")
        A(f"s_cselect_b32 {s(S_TSO)}, {s(S_TSO)}, {INVALID:#x}")
    ts(A, 0, tson)
    if OPT.get('cut') == 0:
        return cut_tail(A, L, Ltop, exit_label)
    rd = [(f"ds_read_b64_tr_b16 {v(mA+4*ks+2*q,2)}, {v(V_LMR)} offset:{ks*1536 + q*128}", f'm{ks}') for ks in range(10) for q in range(2)]
    for x in rd[:12]:
        L.op(*x)
    dm = kv_dma_list()
    if OPT.get('cut') is None:
        Lw3 = A.newlabel('w3st')
        A(f"s_cmp_lg_u32 {s(S_W)}, 3")
        A(f"s_cbranch_scc1 {Lw3}")
        kmvm_store(A)
        if OPT.get('warm', 0):
            A(f"s_mov_b32 m0, {LDS_DUMMY + 2048}")
            A(f"s_add_u32 {s(S_A)}, {s(S_KO)}, {32*8192}")
            A(f"buffer_load_dword {v(V_WK)}, {s(S_WS,4)}, {s(S_A)} offen sc1 lds")
            A(f"s_add_u32 {s(S_A)}, {s(S_VO)}, {32*8192}")
            A(f"buffer_load_dword {v(V_WV)}, {s(S_WS,4)}, {s(S_A)} offen sc1 lds")
        A.label(Lw3)
    if OPT.get('cut') is None:
        for d in dm[:OPT.get('dma_head', 2)]:
            for x in d: A(x)
    issued = 12
    for ks in range(10):
        L.wait(f'm{ks}')
        A(f"v_smfmac_f32_16x16x64_bf16 {v(Dq0,4)}, {v(mA+4*ks,4)}, {wreg(0,ks)}, {v(V_IDX)}")
        if issued < 20:
            L.op(*rd[issued]); issued += 1
        A(f"v_smfmac_f32_16x16x64_bf16 {v(Dq1,4)}, {v(mA+4*ks,4)}, {wreg(1,ks)}, {v(V_IDX)}")
        if issued < 20:
            L.op(*rd[issued]); issued += 1
        if OPT.get('cut') is None and ks == 5:
            for d in dm[OPT.get('dma_head', 2):]:
                for x in d: A(x)
            kv_advance(A)
    if OPT.get('cut') == 1:
        return cut_tail(A, L, Ltop, exit_label)
    t = RC + 16
    def post(D0, D1, woff, tag):
        o = []
        for r in range(4):
            o.append((f"v_permlane32_swap_b32 {v(D0+r)}, {v(D1+r)}", None))
        for r in range(4):
            o.append((f"v_add_f32 {v(D0+r)}, {v(D0+r)}, {v(D1+r)}", None))
        o.append((f"v_cvt_pk_bf16_f32 {v(D0)}, {v(D0)}, {v(D0+1)}", None))
        o.append((f"v_cvt_pk_bf16_f32 {v(D0+1)}, {v(D0+2)}, {v(D0+3)}", None))
        o.append((f"ds_write_b64 {v(V_QW)}, {v(D0,2)} offset:{woff}", tag))
        return o
    def kx_reads(dst, off, tag):
        o = [(f"v_add_u32 {v(t)}, {s(S_KB)}, {v(V_KR)}", None)]
        for ks in range(4):
            if ks:
                o.append((f"v_xor_b32 {v(t)}, {(ks ^ (ks-1)) << 6}, {v(t)}", None))
            o.append((f"ds_read_b128 {v(dst+4*ks,4)}, {v(t)} offset:{off}", tag))
        return o
    def emit(x):
        if isinstance(x, tuple):
            if x[0].startswith('ds_'):
                L.op(x[0], x[1])
            else:
                A(x[0])
        else:
            A(x)
    km = []
    for ks in range(10):
        km.append(f"v_smfmac_f32_16x16x64_bf16 {v(Dk0,4)}, {v(mA+4*ks,4)}, {wreg(2,ks)}, {v(V_IDX)}")
        km.append(f"v_smfmac_f32_16x16x64_bf16 {v(Dk1,4)}, {v(mA+4*ks,4)}, {wreg(3,ks)}, {v(V_IDX)}")
    for x in interleave(km, kx_reads(Kx0, 0, 'kx0') + post(Dq0, Dq1, 0, 'qw'), per=1, start=0):
        emit(x)
    ts(A, 1, tson)
    if OPT.get('cut') == 2:
        return cut_tail(A, L, Ltop, exit_label)
    vm_ = [f"v_smfmac_f32_16x16x64_bf16 {v(Dv,4)}, {v(mA+4*ks,4)}, {wreg(4,ks)}, {v(V_IDX)}" for ks in range(10)]
    for x in vm_[:4]:
        emit(x)
    for x in interleave(vm_[4:], post(Dk0, Dk1, 2048, 'kw'), per=2):
        emit(x)
    for x in kx_reads(Kx1, 4096, 'kx1'):
        emit(x)
    L.wait('kw')
    A("s_barrier")
    ts(A, 2, tson)
    if OPT.get('cut') == 3:
        return cut_tail(A, L, Ltop, exit_label)
    fq, fk = RA, RA + 16
    Sm, Sx0, Sx1 = RA + 32, RA + 36, RB + 16
    Pv = RC + 16
    for ks in range(4):
        for q in range(2):
            L.op(f"ds_read_b64_tr_b16 {v(fq+4*ks+2*q,2)}, {v(V_QR)} offset:{ks*512 + q*64}", f'fq{ks}')
    A(f"v_cvt_pk_bf16_f32 {v(Pv)}, {v(Dv)}, {v(Dv+1)}")
    A(f"v_cvt_pk_bf16_f32 {v(Pv+1)}, {v(Dv+2)}, {v(Dv+3)}")
    L.op(f"ds_write_b64 {v(V_VMW)}, {v(Pv,2)}", 'vmw')
    fkr = [(f"ds_read_b64_tr_b16 {v(fk+4*ks+2*q,2)}, {v(V_QR)} offset:{2048 + ks*512 + q*64}", f'fk{ks}') for ks in range(4) for q in range(2)]
    for x in fkr[:2]:
        L.op(*x)
    for ks in range(4):
        L.wait(f'fq{ks}')
        A(f"v_mfma_f32_16x16x32_bf16 {v(Sx0,4)}, {v(Kx0+4*ks,4)}, {v(fq+4*ks,4)}, {'0' if ks == 0 else v(Sx0,4)}")
        A(f"v_mfma_f32_16x16x32_bf16 {v(Sx1,4)}, {v(Kx1+4*ks,4)}, {v(fq+4*ks,4)}, {'0' if ks == 0 else v(Sx1,4)}")
        if ks < 3:
            for x in fkr[2+2*ks:4+2*ks]:
                L.op(*x)
    for ks in range(4):
        L.wait(f'fk{ks}')
        A(f"v_mfma_f32_16x16x32_bf16 {v(Sm,4)}, {v(fk+4*ks,4)}, {v(fq+4*ks,4)}, {'0' if ks == 0 else v(Sm,4)}")
    if OPT.get('cut') == 4:
        return cut_tail(A, L, Ltop, exit_label)
    A("s_barrier")
    if OPT.get('cut') is None:
        A(f"s_cmp_eq_u32 {s(S_STEP)}, {nsteps-1}")
        A(f"s_cbranch_scc1 {Llast}")
    Vx, Vm = RA, RA + 16
    A(f"s_lshr_b32 {s(S_A)}, {s(S_KB)}, 1")
    A(f"v_add_u32 {v(t)}, {s(S_A)}, {v(V_VR)}")
    mx, tm = RC + 17, RC + 16
    A(f"v_max3_f32 {v(mx)}, {v(Sx0)}, {v(Sx0+1)}, {v(Sx0+2)}")
    for tt in range(4):
        if tt:
            A(f"v_xor_b32 {v(t)}, {(tt ^ (tt-1)) << 5}, {v(t)}")
        L.op(f"ds_read_b64_tr_b16 {v(Vx+4*tt,2)}, {v(t)}", f'vx{tt}')
        L.op(f"ds_read_b64_tr_b16 {v(Vx+4*tt+2,2)}, {v(t)} offset:2048", f'vx{tt}')
    A(f"v_max3_f32 {v(mx)}, {v(mx)}, {v(Sx0+3)}, {v(Sx1)}")
    A(f"v_max3_f32 {v(mx)}, {v(mx)}, {v(Sx1+1)}, {v(Sx1+2)}")
    A(f"v_max3_f32 {v(mx)}, {v(mx)}, {v(Sx1+3)}, {v(Sm)}")
    A(f"v_max3_f32 {v(mx)}, {v(mx)}, {v(Sm+1)}, {v(Sm+2)}")
    A(f"v_max_f32 {v(mx)}, {v(mx)}, {v(Sm+3)}")
    for tt in range(4):
        L.op(f"ds_read_b64 {v(Vm+2*tt,2)}, {v(V_VMR)} offset:{tt*512}", f'vm{tt}')
    A(f"v_mov_b32 {v(tm)}, {v(mx)}")
    WB = [RC, RC + 8, RA + 24]
    def wo_reads(tt, dst):
        L.op(f"ds_read_b128 {v(dst,4)}, {v(V_WOR)} offset:{tt*2048}", f'wo{tt}')
        L.op(f"ds_read_b128 {v(dst+4,4)}, {v(V_WOR)} offset:{tt*2048 + 1024}", f'wo{tt}')
    wo_reads(0, WB[0])
    A(f"v_permlane32_swap_b32 {v(mx)}, {v(tm)}")
    A(f"v_max_f32 {v(mx)}, {v(mx)}, {v(tm)}")
    A(f"v_mov_b32 {v(tm)}, {v(mx)}")
    wo_reads(1, WB[1])
    A(f"v_permlane16_swap_b32 {v(mx)}, {v(tm)}")
    A(f"v_max_f32 {v(mx)}, {v(mx)}, {v(tm)}")
    A(f"v_mul_f32 {v(mx)}, {s(S_NEGC)}, {v(mx)}")
    Px, Pm = RB, RB + 4
    def exps(S, P):
        for j in range(2):
            A(f"v_pk_fma_f32 {v(S+2*j,2)}, {v(S+2*j,2)}, {s(S_POSC,2)}, {v(tm,2)} op_sel:[0,0,1] op_sel_hi:[1,1,1]")
        for r in range(4):
            A(f"v_exp_f32 {v(S+r)}, {v(S+r)}")
        A(f"v_cvt_pk_bf16_f32 {v(P)}, {v(S)}, {v(S+1)}")
        A(f"v_cvt_pk_bf16_f32 {v(P+1)}, {v(S+2)}, {v(S+3)}")
    exps(Sx0, Px)
    exps(Sx1, Px + 2)
    ts(A, 3, tson)
    if OPT.get('cut') == 5:
        return cut_tail(A, L, Ltop, exit_label)
    oD = [RA + 32, RA + 36, RB + 16, RB + 6]
    den = RB + 10
    for j in range(2):
        A(f"v_pk_fma_f32 {v(Sm+2*j,2)}, {v(Sm+2*j,2)}, {s(S_POSC,2)}, {v(tm,2)} op_sel:[0,0,1] op_sel_hi:[1,1,1]")
    L.wait('vx1')
    A(f"v_mfma_f32_16x16x32_bf16 {v(oD[1],4)}, {v(Vx+4,4)}, {v(Px,4)}, 0")
    A(f"v_exp_f32 {v(Sm)}, {v(Sm)}")
    L.wait('vx2')
    A(f"v_mfma_f32_16x16x32_bf16 {v(oD[2],4)}, {v(Vx+8,4)}, {v(Px,4)}, 0")
    A(f"v_exp_f32 {v(Sm+1)}, {v(Sm+1)}")
    L.wait('vx3')
    A(f"v_mfma_f32_16x16x32_bf16 {v(oD[3],4)}, {v(Vx+12,4)}, {v(Px,4)}, 0")
    A(f"v_exp_f32 {v(Sm+2)}, {v(Sm+2)}")
    A(f"v_mfma_f32_16x16x32_bf16 {v(den,4)}, {v(V_ONE,4)}, {v(Px,4)}, 0")
    A(f"v_exp_f32 {v(Sm+3)}, {v(Sm+3)}")
    A(f"v_cvt_pk_bf16_f32 {v(Pm)}, {v(Sm)}, {v(Sm+1)}")
    A(f"v_cvt_pk_bf16_f32 {v(Pm+1)}, {v(Sm+2)}, {v(Sm+3)}")
    A(f"v_mfma_f32_16x16x32_bf16 {v(oD[0],4)}, {v(Vx,4)}, {v(Px,4)}, 0")
    L.wait('vm3')
    A(f"v_mfma_f32_16x16x16_bf16 {v(den,4)}, {v(V_HALF,2)}, {v(Pm,2)}, {v(den,4)}")
    for tt in (1, 2, 3, 0):
        A(f"v_mfma_f32_16x16x16_bf16 {v(oD[tt],4)}, {v(Vm+2*tt,2)}, {v(Pm,2)}, {v(oD[tt],4)}")
    wo_reads(2, WB[2])
    WB += [RA + 4, RA + 12]
    wo_reads(3, WB[3])
    ts(A, 4, tson)
    if OPT.get('cut') == 6:
        return cut_tail(A, L, Ltop, exit_label)
    A(f"v_rcp_f32 {v(tm)}, {v(den)}")
    Aop = [RB, RA]
    for tt in (1, 2, 3, 0):
        for j in range(2):
            A(f"v_pk_mul_f32 {v(oD[tt]+2*j,2)}, {v(oD[tt]+2*j,2)}, {v(tm,2)} op_sel_hi:[1,0]")
    for tt in range(4):
        dst = Aop[tt >> 1] + 2 * (tt & 1)
        A(f"v_cvt_pk_bf16_f32 {v(dst)}, {v(oD[tt])}, {v(oD[tt]+1)}")
        A(f"v_cvt_pk_bf16_f32 {v(dst+1)}, {v(oD[tt]+2)}, {v(oD[tt]+3)}")
    wo_reads(4, WB[4])
    ts(A, 5, tson)
    if OPT.get('cut') == 7:
        return cut_tail(A, L, Ltop, exit_label)
    DW = [RA + 32, RA + 36, RB + 16, RB + 6, RB + 10, RA + 20]
    def wo_post(T0):
        d0, d1 = DW[T0 % 6], DW[(T0 + 1) % 6]
        return [f"v_cvt_pk_bf16_f32 {v(d0)}, {v(d0)}, {v(d0+1)}",
                f"v_cvt_pk_bf16_f32 {v(d0+1)}, {v(d0+2)}, {v(d0+3)}",
                f"v_cvt_pk_bf16_f32 {v(d0+2)}, {v(d1)}, {v(d1+1)}",
                f"v_cvt_pk_bf16_f32 {v(d0+3)}, {v(d1+2)}, {v(d1+3)}",
                f"s_add_u32 {s(S_A)}, {s(S_RSL)}, {(T0//2)*16384}",
                f"v_permlane16_swap_b32 {v(d0)}, {v(d0+2)}",
                f"v_permlane16_swap_b32 {v(d0+1)}, {v(d0+3)}",
                f"buffer_store_dwordx4 {v(d0,4)}, {v(V_RSS)}, {s(S_WS,4)}, {s(S_A)} offen{sc}"] if not OPT.get('nost') else ["s_nop 0"]
    pend = []
    for tt in range(10):
        L.wait(f'wo{tt}')
        b = WB[tt % 5]; d = DW[tt % 6]
        A(f"v_mfma_f32_16x16x32_bf16 {v(d,4)}, {v(Aop[0],4)}, {v(b,4)}, 0")
        for _ in range(2):
            if pend: A(pend.pop(0))
        A(f"v_mfma_f32_16x16x32_bf16 {v(d,4)}, {v(Aop[1],4)}, {v(b+4,4)}, {v(d,4)}")
        if tt + 5 < 10:
            wo_reads(tt + 5, b)
        for _ in range(2):
            if pend: A(pend.pop(0))
        if tt >= 2 and tt % 2 == 0:
            pend += wo_post(tt - 2)
    for x in pend:
        A(x)
    for x in wo_post(8):
        A(x)
    ts(A, 6, tson)
    if OPT.get('cut') == 8:
        return cut_tail(A, L, Ltop, exit_label)
    X, D, U, Y, NEG = RA, RA + 16, RA + 20, RA + 24, RA + 28
    Lnr = A.newlabel('nored'); Lj = A.newlabel('join')
    A(f"s_cmp_eq_u32 {s(S_ISRED)}, 0")
    A(f"s_cbranch_scc1 {Lnr}")
    loads = [f"buffer_load_dwordx4 {v(X+4*j,4)}, {v(V_RSL0)}, {s(S_WS,4)}, {s(S_RSL)} offen offset:{j*1024} sc1" for j in range(4)]
    def fill_rs():
        for r in range(4):
            A(f"v_mov_b32 {v(NEG+r)}, -1")
        A(f"s_lshr_b32 {s(S_TAG)}, {s(S_STEP)}, 1")
        A(f"s_and_b32 {s(S_TAG)}, {s(S_TAG)}, 1")
    poll(A, loads, list(range(X, X + 16)), fill_rs, pre=OPT.get('pre_rs', 0))
    ts(A, 7, tson)
    for j in range(4):
        A(f"v_mfma_f32_16x16x32_bf16 {v(D,4)}, {v(V_SELR,4)}, {v(X+4*j,4)}, {'0' if j == 0 else v(D,4)}")
    for r in range(4):
        A(f"v_add_f32_dpp {v(U+r)}, {v(D+r)}, {v(D+r)} row_ror:8 row_mask:0xf bank_mask:0xf")
    A(f"v_and_or_b32 {v(U)}, {v(U)}, -2, {s(S_TAG)}")
    A(f"buffer_store_dwordx4 {v(U,4)}, {v(V_PGP)}, {s(S_WS,4)}, {s(S_PGP)} offen sc1")
    if tson:
        A(f"s_sub_u32 {s(S_TSV+13)}, 0x100000, {s(S_SPIN)}")
    ts(A, 10, tson)
    for j in range(4):
        A(f"buffer_store_dwordx4 {v(NEG,4)}, {v(V_RSL0)}, {s(S_WS,4)}, {s(S_RSL)} offen offset:{j*1024}{sc}")
    A(f"buffer_store_dwordx4 {v(NEG,4)}, {v(V_AGS)}, {s(S_WS,4)}, {s(S_AGR)} offen{sc}")
    Lw = A.newlabel('exw'); Ld = A.newlabel('exd')
    for _ in range(OPT.get('pre_ex', 0)):
        A("s_nop 15")
    exld = f"buffer_load_dwordx4 {v(Y,4)}, {v(V_PGP)}, {s(S_WS,4)}, {s(S_AGO)} offen sc1"
    A("s_mov_b64 exec, 0x00ff00ff")
    A(exld)
    A(f"s_mov_b32 {s(S_SPIN)}, 0x100000")
    A.label(Lw)
    A("s_waitcnt vmcnt(0)")
    A(f"v_and_b32 {v(RC+17)}, 1, {v(Y)}")
    A(f"v_cmp_ne_u32 vcc, {s(S_TAG)}, {v(RC+17)}")
    A(f"s_cbranch_vccz {Ld}")
    A(exld)
    A(f"s_sub_u32 {s(S_SPIN)}, {s(S_SPIN)}, 1")
    A(f"s_cbranch_scc0 {Lw}")
    A("s_waitcnt vmcnt(0)")
    A.label(Ld)
    A("s_mov_b64 exec, -1")
    if tson:
        A(f"s_sub_u32 {s(S_TSV+14)}, 0x100000, {s(S_SPIN)}")
    ts(A, 8, tson)
    for j in range(2):
        A(f"v_pk_add_f32 {v(U+2*j,2)}, {v(U+2*j,2)}, {v(Y+2*j,2)}")
    A(f"v_cvt_pk_bf16_f32 {v(U)}, {v(U)}, {v(U+1)}")
    A(f"v_cvt_pk_bf16_f32 {v(U+1)}, {v(U+2)}, {v(U+3)}")
    A(f"v_mov_b32 {v(U+2)}, {v(U)}")
    A(f"v_mov_b32 {v(U+3)}, {v(U+1)}")
    A(f"v_permlane16_swap_b32 {v(U)}, {v(U+2)}")
    A(f"v_permlane16_swap_b32 {v(U+1)}, {v(U+3)}")
    A(f"buffer_store_dwordx4 {v(U,4)}, {v(V_AGS)}, {s(S_WS,4)}, {s(S_AGS)} offen{sc}")
    A(f"s_branch {Lj}")
    A.label(Lnr)
    L.ops = []
    A(f"s_cmp_lg_u32 {s(S_W)}, 3")
    A(f"s_cbranch_scc1 {Lj}")
    for _ in range(OPT.get('pre_side', 0)):
        A("s_nop 15")
    if not OPT.get('noside'):
        tail_side_work(A, L)
    A.label(Lj)
    if OPT.get('rt'):
        Lr = A.newlabel('rt')
        A(f"s_or_b32 s85, {s(S_X)}, {s(S_C)}"); A(f"s_cmp_lg_u32 s85, 0"); A(f"s_cbranch_scc1 {Lr}")
        A(f"s_cmp_lg_u32 {s(S_W)}, 3"); A(f"s_cbranch_scc1 {Lr}")
        A(f"s_lshl_b32 s85, {s(S_STEP)}, 2")
        rt_stamp(A, 85, True, RA + 30)
        A.label(Lr)
    ts(A, 11, tson)
    A("s_barrier")
    ts(A, 12, tson)
    X = RA
    loads = [f"buffer_load_dwordx4 {v(X,4)}, {v(V_AG)}, {s(S_WS,4)}, {s(S_AGS)} offen sc1",
             f"buffer_load_dwordx4 {v(X+4,4)}, {v(V_AG)}, {s(S_WS,4)}, {s(S_AGS)} offen offset:1024 sc1",
             f"buffer_load_dwordx4 {v(X+8,4)}, {v(V_AG2)}, {s(S_WS,4)}, {s(S_AGS)} offen offset:2048 sc1"]
    def fill_ag():
        for d in range(20):
            A(f"v_mov_b32 {v(RB+d)}, 0")
        A(f"s_add_u32 {s(S_STEP)}, {s(S_STEP)}, 1")
        A(f"s_xor_b32 {s(S_PGP)}, {s(S_PGP)}, {PG_SLOT}")
        A(f"s_xor_b32 {s(S_AGO)}, {s(S_AGO)}, {PG_SLOT}")
        A(f"s_xor_b32 {s(S_KB)}, {s(S_KB)}, 8192")
        A(f"s_xor_b32 {s(S_RSL)}, {s(S_RSL)}, {RS_SLOT}")
        A(f"s_xor_b32 {s(S_AGR)}, {s(S_AGR)}, {AG_SLOT}")
    poll(A, loads, list(range(X, X + 12)), fill_ag, pre=OPT.get('pre_ag', 0))
    if tson:
        A(f"s_sub_u32 {s(S_TSV+15)}, 0x100000, {s(S_SPIN)}")
    A(f"s_xor_b32 {s(S_AGS)}, {s(S_AGS)}, {AG_SLOT}")
    L.op(f"ds_write_b128 {v(V_LMW)}, {v(X,4)}", 'mw')
    L.op(f"ds_write_b128 {v(V_LMW)}, {v(X+4,4)} offset:1536", 'mw')
    L.op(f"ds_write_b128 {v(V_LMW2)}, {v(X+8,4)} offset:3072", 'mw')
    L.drain()
    ts(A, 9, tson)
    ts_flush(A, tson, RA + 32)
    A("s_barrier")
    A(f"s_branch {Ltop}")
    A.label(Llast)
    L.ops = []
    Lend = A.newlabel('endw')
    A(f"s_cmp_lg_u32 {s(S_W)}, 3")
    A(f"s_cbranch_scc1 {Lend}")
    kmvm_prepare(A, L)
    kmvm_store(A)
    A("s_waitcnt vmcnt(0)")
    if OPT.get('merged'):
        A(f"s_mov_b32 {s(S_C2)}, 64")
        progress(A, S_C2, RB + 4)
        A("s_waitcnt vmcnt(0)")
    A.label(Lend)
    A(f"s_branch {exit_label}")

def gen_chain(A, tson, exit_label):
    import struct
    gen_prologue(A, tson)
    cb = struct.unpack('<I', struct.pack('<f', SCALE_LOG2E))[0]
    nb = struct.unpack('<I', struct.pack('<f', -SCALE_LOG2E))[0]
    A(f"s_mov_b32 {s(S_POSC)}, {cb:#x}")
    A(f"s_mov_b32 {s(S_POSC+1)}, {cb:#x}")
    A(f"s_mov_b32 {s(S_NEGC)}, {nb:#x}")
    A(f"s_mov_b32 {s(S_KMO)}, {INVALID:#x}")
    for d in range(20):
        A(f"v_mov_b32 {v(RB+d)}, 0")
    Lslow = A.newlabel('slow')
    A(f"s_cmp_eq_u32 {s(S_FAST)}, 0")
    A(f"s_cbranch_scc1 {Lslow}")
    gen_loop(A, tson, True, exit_label, OPT.get('nsteps', 64))
    A.label(Lslow)
    gen_loop(A, tson, False, exit_label, OPT.get('nsteps', 64))
```

```python
from asm import *
from layout import *

class Op:
    def __init__(self, kind, rows, ld, srd):
        self.kind, self.rows, self.ld, self.srd = kind, rows, ld, srd
        self.bytes = rows * 128
        self.ninstr = self.bytes // 1024

PROF = {'on': False}
def stamp(A, i):
    if PROF['on']:
        A("s_memtime s[88:89]"); A("s_waitcnt lgkmcnt(0)"); A(f"s_mov_b32 s{90+i}, s88")
def stamp_flush(A):
    if PROF['on']:
        A("s_lshl_b32 s88, s2, 5"); A(f"s_add_u32 s88, s88, {WS_TS:#x}"); A("v_mov_b32 v1, s88")
        for i in range(6):
            A(f"v_mov_b32 v0, s{90+i}"); A(f"buffer_store_dword v0, v1, s[4:7], 0 offen offset:{4*i}"); A("s_nop 1")
        A("s_waitcnt vmcnt(0)")

class Gemm:
    def __init__(self, A, m, n, nk, vb=0, sb=40, wm=2, wn=2):
        self.A = A; self.m = m; self.n = n; self.nk = nk; self.WM = wm; self.WN = wn
        self.TM = m.rows // (16 * wm); self.TN = n.rows // (16 * wn)
        self.stage = m.bytes + n.bytes
        assert (m.ninstr + n.ninstr) % 4 == 0 and m.ninstr % 4 == 0 and n.ninstr % 4 == 0
        self.dm = m.ninstr // 4; self.dn = n.ninstr // 4
        r = vb
        self.acc = r; r += self.TM * self.TN * 4
        self.fm = [r, r + self.TM * 4]; r += 2 * self.TM * 4
        self.fn = [r, r + self.TN * 4]; r += 2 * self.TN * 4
        self.vdm = r; r += self.dm
        self.vdn = r; r += self.dn
        self.am = r; r += (2 if m.kind == 'kc' else self.TM)
        self.an = r; r += (2 if n.kind == 'kc' else self.TN)
        self.tmp = r; r += 10
        self.vend = r
        self.s_w, self.s_wm, self.s_wn, self.s_mo, self.s_no, self.s_k, self.s_dst, self.s_dl, self.s_t0, self.s_t1, self.s_t2 = range(sb, sb + 11)
        self.s_kd = sb + 11; self.s_d0 = sb + 12; self.s_wo = sb + 14
        self.send = sb + 16
    def accr(self, tn, tm):
        return self.acc + (tn * self.TM + tm) * 4

    def lanes(self, tid):
        A = self.A; t = self.tmp
        self.lane, self.ln, self.lg = t, t + 1, t + 2
        A(f"v_and_b32 {v(t)}, 63, {v(tid)}")
        A(f"v_and_b32 {v(t+1)}, 15, {v(t)}")
        A(f"v_lshrrev_b32 {v(t+2)}, 4, {v(t)}")
        A(f"v_lshrrev_b32 {v(t+3)}, 6, {v(tid)}")
        A(f"v_readfirstlane_b32 {s(self.s_w)}, {v(t+3)}")
        A(f"s_and_b32 {s(self.s_wm)}, {s(self.s_w)}, {self.WM-1}")
        A(f"s_lshr_b32 {s(self.s_wn)}, {s(self.s_w)}, {self.WM.bit_length()-1}")

    def _dma_offsets(self, op, dst, cnt):
        A = self.A; t = self.tmp; lane = self.lane
        a, b, c, d = t + 4, t + 5, t + 6, t + 7
        for j in range(cnt):
            A(f"s_mul_i32 {s(self.s_t0)}, {s(self.s_w)}, {cnt}")
            A(f"s_add_u32 {s(self.s_t0)}, {s(self.s_t0)}, {j}")
            if op.kind == 'kc' or op.rows == 64:
                A(f"v_lshrrev_b32 {v(a)}, 3, {v(lane)}")
                A(f"s_lshl_b32 {s(self.s_t1)}, {s(self.s_t0)}, 3")
                A(f"v_add_u32 {v(a)}, {s(self.s_t1)}, {v(a)}")
                A(f"v_and_b32 {v(b)}, 7, {v(lane)}")
                if op.kind == 'kc':
                    A(f"v_bfe_u32 {v(c)}, {v(a)}, 1, 3")
                else:
                    A(f"v_bfe_u32 {v(c)}, {v(a)}, 1, 1")
                    A(f"v_bfe_u32 {v(d)}, {v(a)}, 3, 1")
                    A(f"v_lshl_add_u32 {v(c)}, {v(d)}, 1, {v(c)}")
                    A(f"v_lshlrev_b32 {v(c)}, 1, {v(c)}")
                A(f"v_xor_b32 {v(b)}, {v(b)}, {v(c)}")
            else:
                per = op.rows // 8
                rpi = 64 // per
                sh = per.bit_length() - 1
                A(f"v_lshrrev_b32 {v(a)}, {sh}, {v(lane)}")
                A(f"s_mul_i32 {s(self.s_t1)}, {s(self.s_t0)}, {rpi}")
                A(f"v_add_u32 {v(a)}, {s(self.s_t1)}, {v(a)}")
                A(f"v_and_b32 {v(b)}, {per-1}, {v(lane)}")
                A(f"v_and_b32 {v(c)}, 3, {v(a)}")
                A(f"v_bfe_u32 {v(d)}, {v(a)}, 3, 1")
                A(f"v_lshl_add_u32 {v(c)}, {v(d)}, 2, {v(c)}")
                A(f"v_lshlrev_b32 {v(c)}, 1, {v(c)}")
                A(f"v_xor_b32 {v(b)}, {v(b)}, {v(c)}")
            A(f"s_mov_b32 {s(self.s_t1)}, {op.ld}")
            A(f"v_mul_lo_u32 {v(a)}, {v(a)}, {s(self.s_t1)}")
            A(f"v_lshl_add_u32 {v(dst+j)}, {v(b)}, 4, {v(a)}")

    def _read_addrs(self, op, dst, T, swave, base):
        A = self.A; t = self.tmp; n, g = self.ln, self.lg
        a, b, c, d = t + 4, t + 5, t + 6, t + 7
        if op.kind == 'kc':
            A(f"v_bfe_u32 {v(a)}, {v(n)}, 1, 3")
            A(f"v_xor_b32 {v(a)}, {v(a)}, {v(g)}")
            A(f"v_lshlrev_b32 {v(a)}, 4, {v(a)}")
            A(f"v_lshl_add_u32 {v(a)}, {v(n)}, 7, {v(a)}")
            A(f"s_mul_i32 {s(self.s_t0)}, {s(swave)}, {T*2048}")
            A(f"s_add_u32 {s(self.s_t0)}, {s(self.s_t0)}, {base}")
            A(f"v_add_u32 {v(dst)}, {s(self.s_t0)}, {v(a)}")
            A(f"v_xor_b32 {v(dst+1)}, 64, {v(dst)}")
        else:
            rowb = op.rows * 2
            A(f"v_lshrrev_b32 {v(a)}, 2, {v(n)}")
            A(f"v_and_b32 {v(b)}, 3, {v(n)}")
            if op.rows == 64:
                A(f"v_lshrrev_b32 {v(c)}, 1, {v(a)}")
                A(f"v_and_b32 {v(d)}, 1, {v(g)}")
                A(f"v_lshl_add_u32 {v(c)}, {v(d)}, 1, {v(c)}")
            else:
                A(f"v_and_b32 {v(d)}, 1, {v(g)}")
                A(f"v_lshl_add_u32 {v(c)}, {v(d)}, 2, {v(a)}")
            A(f"v_lshlrev_b32 {v(c)}, 1, {v(c)}")
            A(f"v_lshrrev_b32 {v(d)}, 1, {v(b)}")
            A(f"v_xor_b32 {v(c)}, {v(c)}, {v(d)}")
            A(f"v_lshlrev_b32 {v(c)}, 4, {v(c)}")
            A(f"v_and_b32 {v(d)}, 1, {v(b)}")
            A(f"v_lshl_add_u32 {v(c)}, {v(d)}, 3, {v(c)}")
            A(f"v_lshl_add_u32 {v(d)}, {v(g)}, 3, {v(a)}")
            A(f"s_mov_b32 {s(self.s_t0)}, {rowb}")
            A(f"v_mul_lo_u32 {v(d)}, {v(d)}, {s(self.s_t0)}")
            A(f"v_add_u32 {v(c)}, {v(c)}, {v(d)}")
            for tt in range(T):
                A(f"s_mul_i32 {s(self.s_t0)}, {s(swave)}, {T}")
                A(f"s_add_u32 {s(self.s_t0)}, {s(self.s_t0)}, {tt}")
                per_seg = min(8, op.rows // 16)
                A(f"s_and_b32 {s(self.s_t1)}, {s(self.s_t0)}, {per_seg-1}")
                A(f"s_lshl_b32 {s(self.s_t1)}, {s(self.s_t1)}, 5")
                A(f"v_xor_b32 {v(dst+tt)}, {s(self.s_t1)}, {v(c)}")
                A(f"s_lshr_b32 {s(self.s_t0)}, {s(self.s_t0)}, 3")
                A(f"s_lshl_b32 {s(self.s_t0)}, {s(self.s_t0)}, 8")
                A(f"s_add_u32 {s(self.s_t0)}, {s(self.s_t0)}, {base}")
                A(f"v_add_u32 {v(dst+tt)}, {s(self.s_t0)}, {v(dst+tt)}")

    def setup(self, lds_base=0):
        self.lds = lds_base
        self._dma_offsets(self.m, self.vdm, self.dm)
        self._dma_offsets(self.n, self.vdn, self.dn)
        self._read_addrs(self.m, self.am, self.TM, self.s_wm, lds_base)
        self._read_addrs(self.n, self.an, self.TN, self.s_wn, lds_base + self.m.bytes)

    def _dma_list(self, sdst, smo, sno, fl=''):
        out = []
        for j in range(self.dm):
            out.append([f"s_add_u32 m0, {s(sdst)}, {self.lds + j*1024}",
                        f"buffer_load_dwordx4 {v(self.vdm+j)}, {s(self.m.srd,4)}, {s(smo)} offen{fl} lds"])
        for j in range(self.dn):
            out.append([f"s_add_u32 m0, {s(sdst+1)}, {self.lds + self.m.bytes + j*1024}",
                        f"buffer_load_dwordx4 {v(self.vdn+j)}, {s(self.n.srd,4)}, {s(sno)} offen lds"])
        return out

    def _reads(self, op, T, addr, frag, kk):
        out = []
        for tt in range(T):
            if op.kind == 'kc':
                out.append(f"ds_read_b128 {v(frag+4*tt,4)}, {v(addr+kk)} offset:{tt*2048}")
            else:
                rowb = op.rows * 2
                for q in range(2):
                    out.append(f"ds_read_b64_tr_b16 {v(frag+4*tt+2*q,2)}, {v(addr+tt)} offset:{(32*kk+4*q)*rowb}")
        return out

    def _advance(self):
        A = self.A; S = self.stage
        sd = self.s_d0
        A(f"s_add_u32 {s(self.s_mo)}, {s(self.s_mo)}, {128 if self.m.kind == 'kc' else 64*self.m.ld}")
        A(f"s_add_u32 {s(self.s_no)}, {s(self.s_no)}, {128 if self.n.kind == 'kc' else 64*self.n.ld}")
        A(f"s_add_u32 {s(self.s_kd)}, {s(self.s_kd)}, 1")
        A(f"s_cmp_ge_u32 {s(self.s_kd)}, {self.nk}")
        A(f"s_cmov_b32 {s(self.s_mo)}, {INVALID:#x}")
        A(f"s_cmov_b32 {s(self.s_no)}, {INVALID:#x}")
        A(f"s_add_u32 {s(self.s_dst)}, {s(self.s_dst)}, {S}")
        A(f"s_cmp_eq_u32 {s(self.s_dst)}, {3*S}")
        A(f"s_cmov_b32 {s(self.s_dst)}, 0")
        A(f"s_add_u32 {s(sd)}, {s(self.s_dst)}, {s(self.s_wo)}")
        A(f"s_add_u32 {s(sd+1)}, {s(self.s_dst)}, {s(self.s_wo+1)}")

    def _mix(self, mf, reads, dmas, extra=()):
        A = self.A; n = len(mf)
        slots = [[] for _ in range(n)]
        nr = len(reads); span = max(1, (n * 3) // 4)
        for i, r in enumerate(reads):
            slots[min(n - 1, (i * span) // max(1, nr))].append(r)
        for i, d in enumerate(dmas):
            slots[min(n - 1, (i * n) // len(dmas) + (n // (2 * len(dmas))))].extend(d)
        for i, x in enumerate(extra):
            slots[min(n - 1, n - len(extra) + i) if len(extra) <= n else min(n - 1, (i * n) // len(extra))].append(x)
        for i, x in enumerate(mf):
            A(x)
            for y in slots[i]:
                A(y)

    def run(self, mflags='', between=None, init=None):
        A = self.A; S = self.stage; nd = self.dm + self.dn
        sd = self.s_d0
        A(f"s_mul_i32 {s(self.s_wo)}, {s(self.s_w)}, {self.dm*1024}")
        A(f"s_mul_i32 {s(self.s_wo+1)}, {s(self.s_w)}, {self.dn*1024}")
        A(f"s_mov_b32 {s(self.s_dst)}, 0")
        A(f"s_mov_b32 {s(self.s_kd)}, 0")
        A(f"s_mov_b32 {s(sd)}, {s(self.s_wo)}")
        A(f"s_mov_b32 {s(sd+1)}, {s(self.s_wo+1)}")
        npre = min(3, self.nk)
        first_wait = 2 * nd
        if between is None:
            for st in range(3):
                for d in self._dma_list(sd, self.s_mo, self.s_no, mflags):
                    for x in d: A(x)
                self._advance()
        else:
            assert self.nk >= 3
            ninc = 128 if self.n.kind == 'kc' else 64 * self.n.ld
            minc = 128 if self.m.kind == 'kc' else 64 * self.m.ld
            dl = self._dma_list(sd, self.s_mo, self.s_t2, mflags)
            for st in range(3):
                A(f"s_add_u32 {s(self.s_t2)}, {s(self.s_no)}, {st*ninc}")
                A(f"s_add_u32 {s(sd+1)}, {s(self.s_wo+1)}, {st*S}")
                for d in dl[self.dm:]:
                    for x in d: A(x)
            between()
            dl = self._dma_list(sd, self.s_t2, self.s_no, mflags)
            for st in range(3):
                A(f"s_add_u32 {s(self.s_t2)}, {s(self.s_mo)}, {st*minc}")
                A(f"s_add_u32 {s(sd)}, {s(self.s_wo)}, {st*S}")
                for d in dl[:self.dm]:
                    for x in d: A(x)
            for st in range(3):
                self._advance()
            first_wait = self.dm
        if init is None:
            for r in range(self.TM * self.TN * 4):
                A(f"v_mov_b32 {v(self.acc+r)}, 0")
        else:
            first_wait = init(first_wait)
        self._first_wait = first_wait
        A(f"s_mov_b32 {s(self.s_k)}, 0")
        A(f"s_mov_b32 {s(self.s_dl)}, 0")
        stamp(A, 1)
        A(f"s_waitcnt vmcnt({self._first_wait})")
        A("s_barrier")
        stamp(A, 2)
        for x in self._order(0)['reads']:
            A(x)
        regs = list(range(self.am, self.am + (2 if self.m.kind == 'kc' else self.TM))) + list(range(self.an, self.an + (2 if self.n.kind == 'kc' else self.TN)))
        dl = self._dma_list(sd, self.s_mo, self.s_no, mflags)
        h = len(dl) // 2
        top = A.newlabel('gk')
        A("s_waitcnt lgkmcnt(0)")
        A.label(top)
        first = A.newlabel('gfirst')
        self._mix(self._mfmas(0), self._order(1)['reads'], [])
        A(f"s_add_u32 {s(self.s_dl)}, {s(self.s_dl)}, 1")
        A(f"s_cmp_eq_u32 {s(self.s_dl)}, 3")
        A(f"s_mov_b32 {s(self.s_t1)}, {S}")
        A(f"s_cmov_b32 {s(self.s_t1)}, {-2*S & 0xffffffff:#x}")
        A(f"s_cmov_b32 {s(self.s_dl)}, 0")
        A("s_waitcnt lgkmcnt(0)")
        for r in regs:
            A(f"v_add_u32 {v(r)}, {s(self.s_t1)}, {v(r)}")
        A(f"s_waitcnt vmcnt({nd})")
        A("s_barrier")
        self._mix(self._mfmas(1), self._order(0)['reads'], dl)
        self._advance()
        A(f"s_add_u32 {s(self.s_k)}, {s(self.s_k)}, 1")
        A(f"s_cmp_lt_u32 {s(self.s_k)}, {self.nk}")
        A("s_waitcnt lgkmcnt(0)")
        A(f"s_cbranch_scc1 {top}")
        stamp(A, 3)
        A("s_waitcnt vmcnt(0)")
        A.settle()

    def _order(self, kk):
        return {'reads': self._reads(self.n, self.TN, self.an, self.fn[kk], kk) + self._reads(self.m, self.TM, self.am, self.fm[kk], kk)}
    def _mfmas(self, kk):
        out = []
        for tn in range(self.TN):
            for tm in range(self.TM):
                d = v(self.accr(tn, tm), 4)
                out.append(f"v_mfma_f32_16x16x32_bf16 {d}, {v(self.fn[kk]+4*tn,4)}, {v(self.fm[kk]+4*tm,4)}, {d}")
        return out

    def reset_addrs(self):
        A = self.A; S = self.stage
        off = (self.nk % 3) * S
        if off:
            regs = list(range(self.am, self.am + (2 if self.m.kind == 'kc' else self.TM))) + list(range(self.an, self.an + (2 if self.n.kind == 'kc' else self.TN)))
            for r in regs:
                A(f"v_subrev_u32 {v(r)}, {off}, {v(r)}")

    def row_geometry(self, out_ld, s_out):
        A = self.A; t = self.tmp; lane = self.lane
        cpr = self.TN * 2; sh = cpr.bit_length() - 1
        gq = self.vend
        A(f"v_lshrrev_b32 {v(t+7)}, {sh}, {v(lane)}")
        A(f"s_mov_b32 {s(self.s_t2)}, {out_ld}")
        A(f"v_mul_lo_u32 {v(t+7)}, {v(t+7)}, {s(self.s_t2)}")
        A(f"v_and_b32 {v(gq)}, {cpr-1}, {v(lane)}")
        A(f"v_lshl_add_u32 {v(gq)}, {v(gq)}, 4, {v(t+7)}")
        A(f"s_mul_i32 {s(self.s_t0)}, {s(self.s_wm)}, {self.TM*16*out_ld}")
        A(f"s_mul_i32 {s(self.s_t1)}, {s(self.s_wn)}, {self.TN*32}")
        A(f"s_add_u32 {s(self.s_t0)}, {s(self.s_t0)}, {s(self.s_t1)}")
        A(f"s_add_u32 {s(self.s_t0)}, {s(self.s_t0)}, {s(s_out)}")
        return gq, 64 // cpr, self.TM * 16 // (64 // cpr)

    def epilogue(self, value, rowop, out_srd, out_ld, s_out, flags='', elem_rows=None):
        A = self.A; t = self.tmp; n, g, lane = self.ln, self.lg, self.lane
        rowb = self.TN * 32 + 16
        wb = self.TM * 16 * rowb
        A("s_barrier")
        wa, ra, go = t + 4, t + 5, t + 6
        A(f"s_mul_i32 {s(self.s_t0)}, {s(self.s_w)}, {wb}")
        A(f"s_add_u32 {s(self.s_t0)}, {s(self.s_t0)}, {self.lds}")
        A(f"v_mul_u32_u24 {v(wa)}, {rowb}, {v(n)}")
        A(f"v_lshl_add_u32 {v(wa)}, {v(g)}, 3, {v(wa)}")
        A(f"v_add_u32 {v(wa)}, {s(self.s_t0)}, {v(wa)}")
        for tn in range(self.TN):
            for tm in range(self.TM):
                d = self.accr(tn, tm)
                value(tn, tm, d)
                A(f"v_cvt_pk_bf16_f32 {v(d)}, {v(d)}, {v(d+1)}")
                A(f"v_cvt_pk_bf16_f32 {v(d+1)}, {v(d+2)}, {v(d+3)}")
                A(f"ds_write_b64 {v(wa)}, {v(d,2)} offset:{tm*16*rowb + tn*32}")
        cpr = self.TN * 2
        rpi = 64 // cpr
        sh = cpr.bit_length() - 1
        A(f"v_lshrrev_b32 {v(ra)}, {sh}, {v(lane)}")
        A(f"v_and_b32 {v(go)}, {cpr-1}, {v(lane)}")
        A(f"s_mov_b32 {s(self.s_t2)}, {out_ld}")
        A(f"v_mul_lo_u32 {v(t+7)}, {v(ra)}, {s(self.s_t2)}")
        A(f"v_mul_u32_u24 {v(ra)}, {rowb}, {v(ra)}")
        A(f"v_lshl_add_u32 {v(ra)}, {v(go)}, 4, {v(ra)}")
        A(f"v_add_u32 {v(ra)}, {s(self.s_t0)}, {v(ra)}")
        A(f"v_lshl_add_u32 {v(go)}, {v(go)}, 4, {v(t+7)}")
        A(f"s_mul_i32 {s(self.s_t0)}, {s(self.s_wm)}, {self.TM*16*out_ld}")
        A(f"s_mul_i32 {s(self.s_t1)}, {s(self.s_wn)}, {self.TN*32}")
        A(f"s_add_u32 {s(self.s_t0)}, {s(self.s_t0)}, {s(self.s_t1)}")
        A(f"s_add_u32 {s(self.s_t0)}, {s(self.s_t0)}, {s(s_out)}")
        A("s_waitcnt lgkmcnt(0)")
        nrd = self.TM * 16 // rpi
        buf = self.acc
        for i in range(nrd):
            A(f"ds_read_b128 {v(buf+4*i,4)}, {v(ra)} offset:{i*rpi*rowb}")
        for i in range(nrd):
            A(f"s_waitcnt lgkmcnt({min(15, nrd-1-i)})")
            if rowop:
                rowop(i, buf + 4*i, go, self.s_t0, rpi)
            A(f"buffer_store_dwordx4 {v(buf+4*i,4)}, {v(go)}, {s(out_srd,4)}, {s(self.s_t0)} offen{flags}")
            A(f"s_add_u32 {s(self.s_t0)}, {s(self.s_t0)}, {rpi*out_ld}")

    epilogue_keep = epilogue

    def store_f32(self, out_srd, out_ld, s_out, flags=''):
        A = self.A; t = self.tmp; n, g = self.ln, self.lg
        go = t + 4
        A(f"s_mov_b32 {s(self.s_t2)}, {out_ld}")
        A(f"v_mul_lo_u32 {v(go)}, {v(n)}, {s(self.s_t2)}")
        A(f"v_lshl_add_u32 {v(go)}, {v(g)}, 4, {v(go)}")
        A(f"s_mul_i32 {s(self.s_t0)}, {s(self.s_wm)}, {self.TM*16*out_ld}")
        A(f"s_mul_i32 {s(self.s_t1)}, {s(self.s_wn)}, {self.TN*64}")
        A(f"s_add_u32 {s(self.s_t0)}, {s(self.s_t0)}, {s(self.s_t1)}")
        A(f"s_add_u32 {s(self.s_t0)}, {s(self.s_t0)}, {s(s_out)}")
        for tm in range(self.TM):
            for tn in range(self.TN):
                A(f"buffer_store_dwordx4 {v(self.accr(tn, tm),4)}, {v(go)}, {s(out_srd,4)}, {s(self.s_t0)} offen offset:{tn*64}{flags}")
            A(f"s_add_u32 {s(self.s_t0)}, {s(self.s_t0)}, {16*out_ld}")


    def load_f32(self, srd, ld, s_in, flags=''):
        def init(first_wait):
            A = self.A; t = self.tmp; n, g = self.ln, self.lg
            go = t + 4
            A(f"s_mov_b32 {s(self.s_t2)}, {ld}")
            A(f"v_mul_lo_u32 {v(go)}, {v(n)}, {s(self.s_t2)}")
            A(f"v_lshl_add_u32 {v(go)}, {v(g)}, 4, {v(go)}")
            A(f"s_mul_i32 {s(self.s_t0)}, {s(self.s_wm)}, {self.TM*16*ld}")
            A(f"s_mul_i32 {s(self.s_t1)}, {s(self.s_wn)}, {self.TN*64}")
            A(f"s_add_u32 {s(self.s_t0)}, {s(self.s_t0)}, {s(self.s_t1)}")
            A(f"s_add_u32 {s(self.s_t0)}, {s(self.s_t0)}, {s(s_in)}")
            for tm in range(self.TM):
                for tn in range(self.TN):
                    A(f"buffer_load_dwordx4 {v(self.accr(tn, tm),4)}, {v(go)}, {s(srd,4)}, {s(self.s_t0)} offen offset:{tn*64}{flags}")
                A(f"s_add_u32 {s(self.s_t0)}, {s(self.s_t0)}, {16*ld}")
            return 0
        return init
```

```python
from asm import *
from layout import *
from gemm import Gemm, Op, stamp, stamp_flush, PROF
import struct

def f32bits(x):
    return struct.unpack('<I', struct.pack('<f', x))[0]

def begin(A, name, nwg):
    A.raw(f".globl {name}\n.p2align 8\n.type {name},@function")
    A.label(name)
    A(f"s_cmp_ge_u32 s2, {nwg}")
    A(f"s_cbranch_scc1 {name}_xtra")
    stamp(A, 0)
    if KRT['on']:
        A("s_memrealtime s[96:97]"); A("s_waitcnt lgkmcnt(0)"); A("s_mov_b32 s98, s96")

KRT = {'on': False, 'n': 0}
def end(A, name):
    if PROF['on']:
        A("s_waitcnt vmcnt(0)"); stamp(A, 4); stamp_flush(A)
    A.label(f"{name}_exit")
    if KRT['on']:
        slot = KRT['n']; KRT['n'] += 1
        A("s_load_dwordx2 s[92:93], s[0:1], 128"); A("s_memrealtime s[96:97]"); A("s_waitcnt lgkmcnt(0)")
        A("s_and_b32 s93, s93, 0xffff"); A("s_mov_b32 s94, 0x10000000"); A(f"s_mov_b32 s95, {SRD3:#x}")
        A(f"s_lshl_b32 s99, s2, 3"); A(f"s_add_u32 s99, s99, {WS_TS + 0x10000 + slot*0x2000}")
        A("v_mov_b32 v0, s98"); A("v_mov_b32 v1, s96"); A("v_mov_b32 v2, 0")
        A("buffer_store_dwordx2 v[0:1], v2, s[92:95], s99 offen"); A("s_waitcnt vmcnt(0)")
    A.label(f"{name}_xtra")
    A("s_endpgm")

def descriptor(name, vgpr=256, acc=256, sgpr=102):
    return f""".amdhsa_kernel {name}
  .amdhsa_next_free_vgpr {vgpr}
  .amdhsa_next_free_sgpr {sgpr}
  .amdhsa_accum_offset {acc}
  .amdhsa_group_segment_fixed_size 0
  .amdhsa_kernarg_size 136
  .amdhsa_user_sgpr_count 2
  .amdhsa_user_sgpr_kernarg_segment_ptr 1
  .amdhsa_system_sgpr_workgroup_id_x 1
  .amdhsa_float_denorm_mode_32 3
.end_amdhsa_kernel"""

def srd_fin(A, dst, nbytes):
    A(f"s_and_b32 {s(dst+1)}, {s(dst+1)}, 0xffff")
    A(f"s_mov_b32 {s(dst+2)}, {nbytes}")
    A(f"s_mov_b32 {s(dst+3)}, {SRD3:#x}")

def load_srd(A, dst, key):
    A(f"s_load_dwordx2 {s(dst,2)}, s[0:1], {KA[key]}")

def k_qkv(A, name="qkv_kernel"):
    begin(A, name, 768)
    S_WS, S_W = 4, 8
    load_srd(A, S_WS, 'ws')
    A("s_and_b32 s12, s2, 7"); A("s_lshr_b32 s13, s2, 3")
    A("s_mul_i32 s12, s12, 6"); A("s_lshr_b32 s14, s13, 4"); A("s_add_u32 s12, s12, s14")
    A("s_and_b32 s13, s13, 15")
    A("s_lshr_b32 s14, s12, 4")
    A("s_lshl_b32 s15, s14, 3"); A(f"s_add_u32 s15, s15, {KA['Wq']}")
    A(f"s_load_dwordx2 {s(S_W,2)}, s[0:1], s15")
    A("s_and_b32 s12, s12, 15")
    G = Gemm(A, Op('kc', 128, 1280, S_WS), Op('km', 256, 8192, S_W), 10, vb=2, sb=40)
    G.lanes(0)
    A("s_waitcnt lgkmcnt(0)")
    srd_fin(A, S_WS, WS_BYTES); srd_fin(A, S_W, 640*4096*2)
    G.setup()
    A(f"s_mul_i32 {s(G.s_mo)}, s13, {128*1280}"); A(f"s_add_u32 {s(G.s_mo)}, {s(G.s_mo)}, {WS_H}")
    A(f"s_lshl_b32 {s(G.s_no)}, s12, 9")
    A(f"s_lshl_b32 s16, s14, 24"); A(f"s_add_u32 s16, s16, {WS_Q}")
    A(f"s_mul_i32 s17, s13, {128*8192}"); A("s_add_u32 s16, s16, s17")
    A("s_lshl_b32 s17, s12, 9"); A("s_add_u32 s16, s16, s17")
    G.run()
    G.epilogue(lambda tn, tm, d: None, None, S_WS, 8192, 16)
    A("s_waitcnt vmcnt(0)")
    end(A, name)
    return name, (768, 256, 3 * G.stage), descriptor(name)

def assemble(kernels, header=()):
    A = Asm()
    body = Asm()
    infos = [k(body) for k in kernels]
    out = list(header)
    for name, (g, b, lds), _ in infos:
        out.append(f"; @launch kernel={name} grid=({g},1,1) block=({b},1,1) lds={lds}")
    out.append('.amdgcn_target "amdgcn-amd-amdhsa--gfx950"')
    out.append('.text')
    txt, pads = body.finish()
    desc = '.section .rodata,"a"\n' + '\n'.join('.p2align 6\n' + d for _, _, d in {i[0]: i for i in infos}.values())
    return '\n'.join(out) + '\n' + txt + desc + '\n', pads

def rbf(A, dst, src, tmp=None):
    A(f"v_cvt_pk_bf16_f32 {v(dst)}, {v(src)}, {v(src)}")
    A(f"v_and_b32 {v(dst)}, 0xffff0000, {v(dst)}")

def wave_sum(A, x, t):
    for r in (1, 2, 4, 8):
        A(f"v_add_f32_dpp {v(x)}, {v(x)}, {v(x)} row_ror:{r} row_mask:0xf bank_mask:0xf")
    for sw in ('16', '32'):
        A(f"v_mov_b32 {v(t)}, {v(x)}")
        A(f"v_permlane{sw}_swap_b32 {v(x)}, {v(t)}")
        A(f"v_add_f32 {v(x)}, {v(x)}, {v(t)}")

LOG2E = 1.4426950408889634

def body_mod(A, s_col):
    S_WS, S_C, S_WM = 4, 8, 12
    load_srd(A, S_WS, 'ws'); load_srd(A, S_C, 'c'); load_srd(A, S_WM, 'wmod')
    A("v_and_b32 v1, 63, v0"); A("v_lshrrev_b32 v2, 6, v0")
    A("v_lshrrev_b32 v3, 3, v1"); A("v_lshl_add_u32 v3, v2, 3, v3")
    A("v_and_b32 v4, 7, v1")
    A("s_waitcnt lgkmcnt(0)")
    srd_fin(A, S_WS, WS_BYTES); srd_fin(A, S_C, 1280); srd_fin(A, S_WM, 640*3840*2)
    A("s_movk_i32 s16, 7680")
    A("v_mul_lo_u32 v5, v3, s16"); A("v_lshl_add_u32 v5, v4, 4, v5")
    A(f"s_lshl_b32 s17, {s(s_col)}, 7")
    A("v_lshlrev_b32 v6, 1, v3")
    for i in range(20):
        A(f"buffer_load_ushort v{100+i}, v6, {s(S_C,4)}, 0 offen offset:{i*64}")
    for i in range(20):
        A(f"buffer_load_dwordx4 {v(20+4*i,4)}, v5, {s(S_WM,4)}, s17 offen")
        A(f"s_add_u32 s17, s17, {32*7680}")
    for r in range(8):
        A(f"v_mov_b32 v{10+r}, 0")
    A("s_waitcnt vmcnt(20)")
    for i in range(20):
        c = 100 + i
        A(f"v_lshlrev_b32 v{c}, 16, v{c}")
        A(f"v_mul_f32 v7, {f32bits(-LOG2E):#x}, v{c}")
        A("v_exp_f32 v7, v7"); A("v_add_f32 v7, 1.0, v7"); A("v_rcp_f32 v7, v7")
        A(f"v_mul_f32 v{c}, v{c}, v7")
        rbf(A, c, c)
    for i in range(20):
        A(f"s_waitcnt vmcnt({19-i})")
        for d in range(4):
            A(f"v_lshlrev_b32 v8, 16, v{20+4*i+d}")
            A(f"v_and_b32 v9, 0xffff0000, v{20+4*i+d}")
            A(f"v_fmac_f32 v{10+2*d}, v8, v{100+i}")
            A(f"v_fmac_f32 v{11+2*d}, v9, v{100+i}")
    for r in range(8):
        A(f"v_add_f32_dpp v{10+r}, v{10+r}, v{10+r} row_ror:8 row_mask:0xf bank_mask:0xf")
    for sw in ('16', '32'):
        for r in range(8):
            A(f"v_mov_b32 v{20+r}, v{10+r}")
        for r in range(8):
            A(f"v_permlane{sw}_swap_b32 v{10+r}, v{20+r}")
        for r in range(8):
            A(f"v_add_f32 v{10+r}, v{10+r}, v{20+r}")
    A("v_lshlrev_b32 v8, 5, v4"); A("v_lshl_add_u32 v8, v2, 8, v8")
    A("s_mov_b64 exec, 0xff")
    A("ds_write_b128 v8, v[10:13]"); A("ds_write_b128 v8, v[14:17] offset:16")
    A("s_mov_b64 exec, -1")
    A("s_waitcnt lgkmcnt(0)"); A("s_barrier")
    L = A.newlabel('modw')
    A("v_readfirstlane_b32 s18, v2"); A("s_cmp_lg_u32 s18, 0"); A(f"s_cbranch_scc1 {L}")
    A("v_lshlrev_b32 v8, 2, v1")
    for w in range(4):
        A(f"ds_read_b32 v{10+w}, v8 offset:{w*256}")
    A("s_waitcnt lgkmcnt(0)")
    A("v_add_f32 v10, v10, v11"); A("v_add_f32 v12, v12, v13"); A("v_add_f32 v10, v10, v12")
    rbf(A, 10, 10)
    A(f"s_cmp_ge_u32 {s(s_col)}, 10"); A("s_cselect_b32 s18, 1, 0")
    A(f"s_cmp_lt_u32 {s(s_col)}, 20"); A("s_cselect_b32 s18, s18, 0")
    A(f"s_cmp_ge_u32 {s(s_col)}, 40"); A("s_cselect_b32 s19, 1, 0")
    A(f"s_cmp_lt_u32 {s(s_col)}, 50"); A("s_cselect_b32 s19, s19, 0")
    A("s_or_b32 s18, s18, s19")
    L2 = A.newlabel('mod1')
    A("s_cmp_eq_u32 s18, 0"); A(f"s_cbranch_scc1 {L2}")
    A("v_add_f32 v10, 1.0, v10"); rbf(A, 10, 10)
    A.label(L2)
    A(f"s_lshl_b32 s17, {s(s_col)}, 8"); A(f"s_add_u32 s17, s17, {WS_MOD}")
    A(f"buffer_store_dword v10, v8, {s(S_WS,4)}, s17 offen sc1")
    A("s_waitcnt vmcnt(0)")
    A.label(L)

def k_mod(A, name="mod_kernel"):
    begin(A, name, 60)
    A("s_mov_b32 s20, s2")
    body_mod(A, 20)
    end(A, name)
    return name, (60, 256, 1024), descriptor(name, 128, 128)

def body_ln(A, src_srd, src_off, dst_off, shift_row, scale_row, s_row, nrows, flags=''):
    X = 10; T = 30; MS = 40; MC = 50
    A("v_lshlrev_b32 v2, 2, v1")
    A("v_lshlrev_b32 v3, 3, v1")
    for j in range(5):
        A(f"buffer_load_dwordx2 {v(MS+2*j,2)}, v3, s[4:7], s21 offen offset:{j*512}")
        A(f"buffer_load_dwordx2 {v(MC+2*j,2)}, v3, s[4:7], s22 offen offset:{j*512}")
    for r in range(nrows):
        A(f"s_add_u32 s24, {s(s_row)}, {r}")
        A("s_mul_i32 s24, s24, 1280")
        A(f"s_add_u32 s25, s24, {src_off}")
        for j in range(5):
            A(f"buffer_load_dword v{X+10*0+5+j}, v2, {s(src_srd,4)}, s25 offen offset:{j*256}")
        A("s_waitcnt vmcnt(0)")
        for j in range(5):
            A(f"v_lshlrev_b32 v{T+2*j}, 16, v{X+5+j}")
            A(f"v_and_b32 v{T+2*j+1}, 0xffff0000, v{X+5+j}")
        A(f"v_add_f32 v4, v{T}, v{T+1}")
        for j in range(2, 10):
            A(f"v_add_f32 v4, v4, v{T+j}")
        wave_sum(A, 4, 5)
        A(f"v_mul_f32 v4, {f32bits(1/640):#x}, v4")
        A("v_mov_b32 v6, 0")
        for j in range(10):
            A(f"v_sub_f32 v5, v{T+j}, v4")
            A("v_fmac_f32 v6, v5, v5")
        wave_sum(A, 6, 5)
        A(f"v_mul_f32 v6, {f32bits(1/640):#x}, v6")
        rbf(A, 6, 6)
        A(f"v_add_f32 v6, {f32bits(1e-5):#x}, v6"); rbf(A, 6, 6)
        A("v_sqrt_f32 v6, v6"); A("s_nop 0"); rbf(A, 6, 6)
        A("v_rcp_f32 v7, v6")
        rbf(A, 4, 4)
        for j in range(10):
            x = T + j
            A(f"v_sub_f32 v{x}, v{x}, v4"); rbf(A, x, x)
            A(f"v_mul_f32 v5, v{x}, v7")
            A(f"v_fma_f32 v8, -v5, v6, v{x}")
            A(f"v_fma_f32 v{x}, v8, v7, v5"); rbf(A, x, x)
            A(f"v_mul_f32 v{x}, v{x}, v{MC+j}"); rbf(A, x, x)
            A(f"v_add_f32 v{x}, v{x}, v{MS+j}")
        A(f"s_add_u32 s25, s24, {dst_off}")
        for j in range(5):
            A(f"v_cvt_pk_bf16_f32 v{X+j}, v{T+2*j}, v{T+2*j+1}")
            A(f"buffer_store_dword v{X+j}, v2, s[4:7], s25 offen offset:{j*256}{flags}")

def body_fin(A, s_row, nrows, xsrd, wait=None):
    GA, MS, MC = 60, 40, 50
    P = 70
    XR = 15; T = 30
    A("v_lshlrev_b32 v2, 2, v1"); A("v_lshlrev_b32 v3, 3, v1")
    A(f"s_mov_b32 s21, {WS_MOD + 3*2560}"); A(f"s_mov_b32 s22, {WS_MOD + 4*2560}"); A(f"s_mov_b32 s23, {WS_MOD + 2*2560}")
    for j in range(5):
        A(f"buffer_load_dwordx2 {v(MS+2*j,2)}, v3, s[4:7], s21 offen offset:{j*512}")
        A(f"buffer_load_dwordx2 {v(MC+2*j,2)}, v3, s[4:7], s22 offen offset:{j*512}")
        A(f"buffer_load_dwordx2 {v(GA+2*j,2)}, v3, s[4:7], s23 offen offset:{j*512}")
    def loads(r, pb, xb):
        A(f"s_add_u32 s24, {s(s_row)}, {r}")
        A("s_mul_i32 s25, s24, 2560"); A(f"s_add_u32 s25, s25, {WS_WP}")
        for sp in range(4):
            for j in range(5):
                A(f"buffer_load_dwordx2 {v(pb+10*sp+2*j,2)}, v3, s[4:7], s25 offen offset:{j*512} sc1")
            A(f"s_add_u32 s25, s25, {2048*2560}")
        A("s_mul_i32 s25, s24, 1280")
        for j in range(5):
            A(f"buffer_load_dword v{xb+j}, v2, {s(xsrd,4)}, s25 offen offset:{j*256}")
    PB = [P, P + 40]; XB = [XR, XR + 5]
    if wait: wait()
    loads(0, PB[0], XB[0])
    for r in range(nrows):
        pb, xb = PB[r & 1], XB[r & 1]
        if r + 1 < nrows:
            loads(r + 1, PB[(r+1) & 1], XB[(r+1) & 1])
            A("s_waitcnt vmcnt(25)")
        else:
            A("s_waitcnt vmcnt(0)")
        for j in range(10):
            x = T + j
            A(f"v_add_f32 v{x}, v{pb+j}, v{pb+10+j}"); A(f"v_add_f32 v5, v{pb+20+j}, v{pb+30+j}"); A(f"v_add_f32 v{x}, v{x}, v5")
            rbf(A, x, x)
            A(f"v_mul_f32 v{x}, v{x}, v{GA+j}"); rbf(A, x, x)
            if j & 1: A(f"v_and_b32 v5, 0xffff0000, v{xb+j//2}")
            else: A(f"v_lshlrev_b32 v5, 16, v{xb+j//2}")
            A(f"v_add_f32 v{x}, v{x}, v5")
        A(f"s_add_u32 s24, {s(s_row)}, {r}"); A("s_mul_i32 s24, s24, 1280")
        A(f"s_add_u32 s25, s24, {WS_X1}")
        for j in range(5):
            A(f"v_cvt_pk_bf16_f32 v{10+j}, v{T+2*j}, v{T+2*j+1}")
            A(f"buffer_store_dword v{10+j}, v2, s[4:7], s25 offen offset:{j*256}")
            A(f"v_lshlrev_b32 v{T+2*j}, 16, v{10+j}"); A(f"v_and_b32 v{T+2*j+1}, 0xffff0000, v{10+j}")
        ln_core(A, T, MS, MC)
        A(f"s_add_u32 s25, s24, {WS_H2}")
        for j in range(5):
            A(f"v_cvt_pk_bf16_f32 v{25+j}, v{T+2*j}, v{T+2*j+1}")
            A(f"buffer_store_dword v{25+j}, v2, s[4:7], s25 offen offset:{j*256} sc1")

def ln_core(A, T, MS, MC):
    A(f"v_add_f32 v4, v{T}, v{T+1}")
    for j in range(2, 10):
        A(f"v_add_f32 v4, v4, v{T+j}")
    wave_sum(A, 4, 5)
    A(f"v_mul_f32 v4, {f32bits(1/640):#x}, v4")
    A("v_mov_b32 v6, 0")
    for j in range(10):
        A(f"v_sub_f32 v5, v{T+j}, v4")
        A("v_fmac_f32 v6, v5, v5")
    wave_sum(A, 6, 5)
    A(f"v_mul_f32 v6, {f32bits(1/640):#x}, v6")
    rbf(A, 6, 6)
    A(f"v_add_f32 v6, {f32bits(1e-5):#x}, v6"); rbf(A, 6, 6)
    A("v_sqrt_f32 v6, v6"); A("s_nop 0"); rbf(A, 6, 6)
    A("v_rcp_f32 v7, v6")
    rbf(A, 4, 4)
    for j in range(10):
        x = T + j
        A(f"v_sub_f32 v{x}, v{x}, v4"); rbf(A, x, x)
        A(f"v_mul_f32 v5, v{x}, v7")
        A(f"v_fma_f32 v8, -v5, v6, v{x}")
        A(f"v_fma_f32 v{x}, v8, v7, v5"); rbf(A, x, x)
        A(f"v_mul_f32 v{x}, v{x}, v{MC+j}"); rbf(A, x, x)
        A(f"v_add_f32 v{x}, v{x}, v{MS+j}")

def k_ln(first):
    def gen(A):
        name = "ln1_kernel" if first else "ln2_kernel"
        begin(A, name, 512)
        load_srd(A, 4, 'ws')
        if first: load_srd(A, 8, 'x')
        A("v_and_b32 v1, 63, v0"); A("v_lshrrev_b32 v2, 6, v0"); A("v_readfirstlane_b32 s20, v2")
        A("s_lshl_b32 s23, s2, 2"); A("s_add_u32 s20, s20, s23")
        A(f"s_mov_b32 s21, {WS_MOD + (0 if first else 3*2560)}")
        A(f"s_mov_b32 s22, {WS_MOD + (2560 if first else 4*2560)}")
        A("s_waitcnt lgkmcnt(0)")
        srd_fin(A, 4, WS_BYTES)
        if first: srd_fin(A, 8, 2048*1280)
        body_ln(A, 8 if first else 4, 0 if first else WS_X1, WS_H if first else WS_H2, 0, 0, 20, 1)
        A("s_waitcnt vmcnt(0)")
        end(A, name)
        return name, (512, 256, 0), descriptor(name, 64, 64)
    return gen
k_ln1 = k_ln(True); k_ln2 = k_ln(False)

def unpack_add_pack(A, dst, other, t):
    for d in range(4):
        A(f"v_lshlrev_b32 {v(t)}, 16, {v(dst+d)}")
        A(f"v_lshlrev_b32 {v(t+1)}, 16, {v(other+d)}")
        A(f"v_and_b32 {v(t+2)}, 0xffff0000, {v(dst+d)}")
        A(f"v_and_b32 {v(t+3)}, 0xffff0000, {v(other+d)}")
        A(f"v_add_f32 {v(t)}, {v(t)}, {v(t+1)}")
        A(f"v_add_f32 {v(t+2)}, {v(t+2)}, {v(t+3)}")
        A(f"v_cvt_pk_bf16_f32 {v(dst+d)}, {v(t)}, {v(t+2)}")

class Resid:
    def __init__(self, A, G, gate_off, res_srd, s_res, out_srd, out_ld, s_out, s_ncol, bias_m=None, flags=''):
        self.__dict__.update(locals())
        self.base = (G.vend + 2) & ~1
        self.gate = self.base; self.bm = self.gate + G.TN * 4; self.res = (self.bm + G.TM + 1) & ~1
    def prefetch(self):
        A, G = self.A, self.G; t = G.tmp; n, g = G.ln, G.lg
        A(f"s_mul_i32 {s(G.s_t0)}, {s(G.s_wn)}, {G.TN*16}")
        A(f"s_add_u32 {s(G.s_t0)}, {s(G.s_t0)}, {s(self.s_ncol)}")
        A(f"s_lshl_b32 {s(G.s_t0)}, {s(G.s_t0)}, 2")
        A(f"s_add_u32 {s(G.s_t0)}, {s(G.s_t0)}, {self.gate_off}")
        A(f"v_lshlrev_b32 {v(t+8)}, 4, {v(g)}")
        for tn in range(G.TN):
            A(f"buffer_load_dwordx4 {v(self.gate+4*tn,4)}, {v(t+8)}, s[4:7], {s(G.s_t0)} offen offset:{tn*64}")
        if self.bias_m:
            bsrd, s_mrow = self.bias_m
            A(f"s_mul_i32 {s(G.s_t0)}, {s(G.s_wm)}, {G.TM*16}")
            A(f"s_add_u32 {s(G.s_t0)}, {s(G.s_t0)}, {s(s_mrow)}")
            A(f"s_lshl_b32 {s(G.s_t0)}, {s(G.s_t0)}, 1")
            A(f"v_lshlrev_b32 {v(t+9)}, 1, {v(n)}")
            for tm in range(G.TM):
                A(f"buffer_load_ushort {v(self.bm+tm)}, {v(t+9)}, {s(bsrd,4)}, {s(G.s_t0)} offen offset:{tm*32}")
        gq, rpi, nrd = G.row_geometry(self.out_ld, self.s_res)
        self.nrd = nrd
        for i in range(nrd):
            A(f"buffer_load_dwordx4 {v(self.res+4*i,4)}, {v(gq)}, {s(self.res_srd,4)}, {s(G.s_t0)} offen")
            A(f"s_add_u32 {s(G.s_t0)}, {s(G.s_t0)}, {rpi*self.out_ld}")
        self.nloads = G.TN + (G.TM if self.bias_m else 0) + nrd
    def finish(self):
        A, G = self.A, self.G
        if self.bias_m:
            for tm in range(G.TM):
                A(f"v_lshlrev_b32 {v(self.bm+tm)}, 16, {v(self.bm+tm)}")
        def value(tn, tm, d):
            for r in range(4):
                if self.bias_m:
                    A(f"v_add_f32 {v(d+r)}, {v(d+r)}, {v(self.bm+tm)}")
                A(f"v_mul_f32 {v(d+r)}, {v(d+r)}, {v(self.gate+4*tn+r)}")
        tq = self.res + 4 * self.nrd
        def rowop(i, reg, voff, soff, rpi):
            unpack_add_pack(A, reg, self.res + 4*i, tq)
        G.epilogue(value, rowop, self.out_srd, self.out_ld, self.s_out, self.flags)

def k_wo(A, name="wo_kernel"):
    begin(A, name, 160)
    load_srd(A, 4, 'ws'); load_srd(A, 8, 'Wo'); load_srd(A, 12, 'x')
    A("s_and_b32 s17, s2, 15"); A("s_lshr_b32 s16, s2, 4")
    G = Gemm(A, Op('kc', 128, 8192, 4), Op('km', 64, 1280, 8), 64, vb=2, sb=40)
    G.lanes(0)
    A("s_waitcnt lgkmcnt(0)")
    srd_fin(A, 4, WS_BYTES); srd_fin(A, 8, 4096*1280); srd_fin(A, 12, 2048*1280)
    G.setup()
    A(f"s_mul_i32 {s(G.s_mo)}, s17, {128*8192}"); A(f"s_add_u32 {s(G.s_mo)}, {s(G.s_mo)}, {WS_O}")
    A(f"s_lshl_b32 {s(G.s_no)}, s16, 7")
    A(f"s_mul_i32 s18, s17, {128*1280}"); A("s_lshl_b32 s19, s16, 7"); A("s_add_u32 s18, s18, s19")
    A(f"s_add_u32 s19, s18, {WS_X1}")
    A("s_lshl_b32 s20, s16, 6")
    R = Resid(A, G, WS_MOD + 2*2560, 12, 18, 4, 1280, 19, 20)
    R.prefetch()
    G.run()
    R.finish()
    A("s_waitcnt vmcnt(0)")
    end(A, name)
    return name, (160, 256, 3 * G.stage), descriptor(name)

MLP1_HEAD = 24

def k_mlp1(A, name="mlp1_kernel", partial=True):
    begin(A, name, 135)
    k0 = MLP1_HEAD if partial else 0
    load_srd(A, 4, 'ws'); load_srd(A, 8, 'w1'); load_srd(A, 12, 'b1')
    A("s_mul_hi_u32 s16, s2, 0x33333334"); A("s_mul_i32 s17, s16, 5"); A("s_sub_u32 s17, s2, s17")
    G = Gemm(A, Op('km', 128, 1280, 4), Op('km', 64, 3456, 8), 32 - k0, vb=2, sb=40)
    G.lanes(0)
    A("s_waitcnt lgkmcnt(0)")
    srd_fin(A, 4, WS_BYTES); srd_fin(A, 8, 2048*3456); srd_fin(A, 12, 3456)
    G.setup()
    A(f"s_lshl_b32 {s(G.s_mo)}, s17, 8"); A(f"s_add_u32 {s(G.s_mo)}, {s(G.s_mo)}, {WS_H2 + k0*64*1280}")
    A(f"s_lshl_b32 {s(G.s_no)}, s16, 7"); A(f"s_add_u32 {s(G.s_no)}, {s(G.s_no)}, {k0*64*3456}")
    A(f"s_mul_i32 s18, s17, {128*3456}"); A("s_lshl_b32 s19, s16, 7"); A("s_add_u32 s18, s18, s19"); A(f"s_add_u32 s18, s18, {WS_U}")
    bb = mlp1_bias(A, G, 16)
    if partial:
        A(f"s_mul_i32 s20, s17, {128*6912}"); A("s_lshl_b32 s21, s16, 8"); A("s_add_u32 s20, s20, s21"); A(f"s_add_u32 s20, s20, {WS_UP}")
        G.run(init=G.load_f32(4, 6912, 20))
    else:
        G.run()
    mlp1_epilogue(A, G, bb, 18)
    A("s_waitcnt vmcnt(0)")
    end(A, name)
    return name, (135, 256, 3 * G.stage), descriptor(name)

def k_mlp1_full(A):
    return k_mlp1(A, "mlp1_kernel", partial=False)

def mlp1_bias(A, G, s_nb):
    t = G.tmp; g = G.lg; bb = G.vend + 1
    bb += bb & 1
    A(f"s_lshl_b32 {s(G.s_t0)}, {s(s_nb)}, 7")
    A(f"s_mul_i32 {s(G.s_t1)}, {s(G.s_wn)}, {G.TN*32}")
    A(f"s_add_u32 {s(G.s_t0)}, {s(G.s_t0)}, {s(G.s_t1)}")
    A(f"v_lshlrev_b32 {v(t+8)}, 3, {v(g)}")
    for tn in range(G.TN):
        A(f"buffer_load_dwordx2 {v(bb+4*tn,2)}, {v(t+8)}, s[12:15], {s(G.s_t0)} offen offset:{tn*32}")
    return bb

def mlp1_epilogue(A, G, bb, s_out, flags=''):
    t = G.tmp
    for tn in range(G.TN):
        b = bb + 4*tn
        A(f"v_and_b32 {v(b+3)}, 0xffff0000, {v(b+1)}"); A(f"v_lshlrev_b32 {v(b+2)}, 16, {v(b+1)}")
        A(f"v_and_b32 {v(b+1)}, 0xffff0000, {v(b)}"); A(f"v_lshlrev_b32 {v(b)}, 16, {v(b)}")
    c1 = 0.7978845608028654; c2 = 0.044715
    A(f"s_mov_b32 {s(G.s_t1)}, {f32bits(c2):#x}")
    A(f"s_mov_b32 {s(G.s_t2)}, {f32bits(-2*c1*LOG2E):#x}")
    xs = [t + 8, t + 9, t + 3, t + 7]
    def value(tn, tm, d):
        for r in range(4):
            A(f"v_add_f32 {v(d+r)}, {v(d+r)}, {v(bb+4*tn+r)}")
        for r in range(4):
            A(f"v_mul_f32 {v(xs[r])}, {v(d+r)}, {v(d+r)}")
        for r in range(4):
            A(f"v_fma_f32 {v(xs[r])}, {v(xs[r])}, {s(G.s_t1)}, 1.0")
        for r in range(4):
            A(f"v_mul_f32 {v(xs[r])}, {v(xs[r])}, {v(d+r)}")
        for r in range(4):
            A(f"v_mul_f32 {v(xs[r])}, {s(G.s_t2)}, {v(xs[r])}")
        for r in range(4):
            A(f"v_exp_f32 {v(xs[r])}, {v(xs[r])}")
        for r in range(4):
            A(f"v_add_f32 {v(xs[r])}, 1.0, {v(xs[r])}")
        for r in range(4):
            A(f"v_rcp_f32 {v(xs[r])}, {v(xs[r])}")
        for r in range(4):
            A(f"v_mul_f32 {v(d+r)}, {v(d+r)}, {v(xs[r])}")
    G.epilogue(value, None, 4, 3456, s_out, flags)

def k_mlp2(A, name="mlp2_kernel"):
    begin(A, name, 160)
    load_srd(A, 4, 'ws'); load_srd(A, 8, 'w2'); load_srd(A, 12, 'b2'); load_srd(A, 24, 'out')
    A("s_and_b32 s17, s2, 15"); A("s_lshr_b32 s16, s2, 4")
    G = Gemm(A, Op('km', 128, 4096, 8), Op('kc', 64, 3456, 4), 27, vb=2, sb=40)
    G.lanes(0)
    A("s_waitcnt lgkmcnt(0)")
    srd_fin(A, 4, WS_BYTES); srd_fin(A, 8, 1728*4096); srd_fin(A, 12, 4096); srd_fin(A, 24, 2048*1280)
    G.setup()
    A(f"s_lshl_b32 {s(G.s_mo)}, s17, 8")
    A(f"s_mul_i32 {s(G.s_no)}, s16, {64*3456}"); A(f"s_add_u32 {s(G.s_no)}, {s(G.s_no)}, {WS_U}")
    A(f"s_mul_i32 s19, s17, {128*1280}"); A("s_lshl_b32 s18, s16, 7"); A("s_add_u32 s19, s19, s18")
    A(f"s_add_u32 s18, s19, {WS_X1}")
    A("s_lshl_b32 s20, s16, 6"); A("s_lshl_b32 s21, s17, 7")
    R = Resid(A, G, WS_MOD + 5*2560, 4, 18, 24, 1280, 19, 20, bias_m=(12, 21))
    R.prefetch()
    G.run()
    R.finish()
    A("s_waitcnt vmcnt(0)")
    end(A, name)
    return name, (160, 256, 3 * G.stage), descriptor(name)

ATT_C = 0.08838834764831845 * LOG2E

def body_att(A, s_seg, s_head, lds_wave, flags='', ldfl='', wait_mem=None):
    n, g = 2, 3
    FQ, FK, FM, VMF = 10, 42, 74, 90
    VF = 106
    SC = 138
    PK = 158
    ONE = 170
    DEN = 174
    O = 182
    t = 4
    A(f"v_and_b32 v{n}, 15, v1"); A(f"v_lshrrev_b32 v{g}, 4, v1")
    A(f"s_lshl_b32 s30, {s(s_seg)}, 18"); A(f"s_lshl_b32 s31, {s(s_head)}, 8"); A("s_add_u32 s30, s30, s31")
    A(f"v_lshlrev_b32 v{t}, 13, v{n}"); A(f"v_lshl_add_u32 v{t}, v{g}, 4, v{t}")
    A(f"s_add_u32 s31, s30, {WS_Q}"); A(f"s_add_u32 s32, s30, {WS_K}"); A(f"s_add_u32 s33, s30, {WS_V}")
    for i in range(8):
        A(f"v_add_u32 v{t+1}, {4*(i&1)}, v{g}"); A(f"v_lshlrev_b32 v{t+1}, 1, v{t+1}"); A(f"v_xor_b32 v{t+1}, v{t+1}, v{n}")
        A(f"v_lshlrev_b32 v{t+1}, 4, v{t+1}"); A(f"v_lshl_add_u32 v{t+1}, v{g}, 13, v{t+1}")
        A(f"s_add_u32 m0, {s(lds_wave)}, {i*1024}"); A(f"s_add_u32 s34, s33, {4*i*8192}")
        A(f"buffer_load_dwordx4 v{t+1}, s[4:7], s34 offen{ldfl} lds")
    for tl in range(2):
        for ks in range(4):
            A(f"buffer_load_dwordx4 {v(FQ+16*tl+4*ks,4)}, v{t}, s[4:7], s31 offen offset:{ks*64}{ldfl}")
            A(f"buffer_load_dwordx4 {v(FK+16*tl+4*ks,4)}, v{t}, s[4:7], s32 offen offset:{ks*64}{ldfl}")
        A(f"s_add_u32 s31, s31, {16*8192}"); A(f"s_add_u32 s32, s32, {16*8192}")
    if wait_mem:
        wait_mem()
    A(f"s_lshl_b32 s34, {s(s_seg)}, 5"); A(f"s_add_u32 s34, s34, {s(s_head)}"); A("s_lshl_b32 s34, s34, 11")
    A(f"s_add_u32 s35, s34, {WS_KM}"); A(f"s_add_u32 s36, s34, {WS_VM}")
    A(f"v_lshlrev_b32 v{t+1}, 4, v1")
    for i in range(2):
        A(f"s_add_u32 m0, {s(lds_wave)}, {8192 + i*1024}")
        A(f"buffer_load_dwordx4 v{t+1}, s[4:7], s35 offen{ldfl} lds")
        A("s_add_u32 s35, s35, 1024")
    A(f"v_and_b32 v{t+1}, 1, v{g}"); A(f"v_lshlrev_b32 v{t+1}, 3, v{t+1}"); A(f"v_lshl_add_u32 v{t+1}, v{n}, 4, v{t+1}")
    for tl in range(8):
        A(f"buffer_load_dwordx2 {v(VMF+2*tl,2)}, v{t+1}, s[4:7], s36 offen offset:{tl*256}{ldfl}")
    for r in range(4):
        A(f"v_lshl_add_u32 v{t+2}, v{g}, 2, {r}")
        A(f"v_cmp_gt_u32 {s(60+2*r,2)}, v{t+2}, v{n}")
    A(f"v_cmp_lt_u32 s[68:69], 1, v{g}")
    for d in range(4):
        A(f"v_mov_b32 v{ONE+d}, 0x3f803f80")
    rr, cc = t + 2, t + 3
    A(f"v_lshrrev_b32 v{rr}, 2, v{n}"); A(f"v_and_b32 v{cc}, 3, v{n}")
    ka, va = 8, 9
    A(f"v_lshl_add_u32 v{ka}, v{g}, 3, v{rr}"); A(f"v_lshlrev_b32 v{ka}, 4, v{ka}")
    A(f"v_and_b32 v{t+1}, 1, v{cc}"); A(f"v_lshl_add_u32 v{ka}, v{t+1}, 3, v{ka}")
    A(f"v_add_u32 v{ka}, {s(lds_wave)}, v{ka}"); A(f"v_add_u32 v{ka}, 8192, v{ka}")
    A(f"v_lshl_add_u32 v{va}, v{g}, 2, v{rr}")
    A(f"v_and_b32 v{t}, 7, v{va}"); A(f"v_lshlrev_b32 v{t}, 1, v{t}"); A(f"v_lshrrev_b32 v{t+1}, 1, v{cc}")
    A(f"v_xor_b32 v{t}, v{t}, v{t+1}"); A(f"v_lshlrev_b32 v{t}, 4, v{t}")
    A(f"v_lshl_add_u32 v{t}, v{va}, 8, v{t}"); A(f"v_and_b32 v{t+1}, 1, v{cc}"); A(f"v_lshl_add_u32 v{t}, v{t+1}, 3, v{t}")
    A(f"v_add_u32 v{va}, {s(lds_wave)}, v{t}")
    A("s_waitcnt vmcnt(0)")
    for ks in range(4):
        for q in range(2):
            A(f"ds_read_b64_tr_b16 {v(FM+4*ks+2*q,2)}, v{ka} offset:{ks*512 + q*64}")
    for tl in range(8):
        A(f"v_xor_b32 v{t}, {32*tl}, v{va}")
        A(f"ds_read_b64_tr_b16 {v(VF+4*tl,2)}, v{t}")
        A(f"ds_read_b64_tr_b16 {v(VF+4*tl+2,2)}, v{t} offset:4096")
    Sm = [SC, SC + 8]; Sx0 = [SC + 4, SC + 12]; Sx1 = SC + 16
    for ks in range(4):
        c = lambda d: '0' if ks == 0 else v(d, 4)
        A(f"v_mfma_f32_16x16x32_bf16 {v(Sx0[0],4)}, {v(FK+4*ks,4)}, {v(FQ+4*ks,4)}, {c(Sx0[0])}")
        A(f"v_mfma_f32_16x16x32_bf16 {v(Sx0[1],4)}, {v(FK+4*ks,4)}, {v(FQ+16+4*ks,4)}, {c(Sx0[1])}")
        A(f"v_mfma_f32_16x16x32_bf16 {v(Sx1,4)}, {v(FK+16+4*ks,4)}, {v(FQ+16+4*ks,4)}, {c(Sx1)}")
    A("s_waitcnt lgkmcnt(0)")
    for ks in range(4):
        c = lambda d: '0' if ks == 0 else v(d, 4)
        A(f"v_mfma_f32_16x16x32_bf16 {v(Sm[0],4)}, {v(FM+4*ks,4)}, {v(FQ+4*ks,4)}, {c(Sm[0])}")
        A(f"v_mfma_f32_16x16x32_bf16 {v(Sm[1],4)}, {v(FM+4*ks,4)}, {v(FQ+16+4*ks,4)}, {c(Sm[1])}")
    NEG = t + 1
    A(f"v_mov_b32 v{NEG}, {f32bits(-1e30):#x}")
    A(f"s_mov_b32 s37, {f32bits(ATT_C):#x}"); A(f"s_mov_b32 s38, {f32bits(-ATT_C):#x}")
    A.settle()
    for qt in range(2):
        diag = Sx0[0] if qt == 0 else Sx1
        for r in range(4):
            A(f"v_cndmask_b32 v{diag+r}, v{diag+r}, v{NEG}, {s(60+2*r,2)}")
            A(f"v_cndmask_b32 v{Sm[qt]+r}, v{Sm[qt]+r}, v{NEG}, s[68:69]")
        regs = list(range(Sm[qt], Sm[qt]+4)) + list(range(Sx0[qt], Sx0[qt]+4)) + (list(range(Sx1, Sx1+4)) if qt else [])
        mx, tm = t + 2, t + 3
        A(f"v_max3_f32 v{mx}, v{regs[0]}, v{regs[1]}, v{regs[2]}")
        rest = regs[3:]
        while len(rest) >= 2:
            A(f"v_max3_f32 v{mx}, v{mx}, v{rest[0]}, v{rest[1]}"); rest = rest[2:]
        if rest: A(f"v_max_f32 v{mx}, v{mx}, v{rest[0]}")
        for sw in ('32', '16'):
            A(f"v_mov_b32 v{tm}, v{mx}"); A(f"v_permlane{sw}_swap_b32 v{mx}, v{tm}"); A(f"v_max_f32 v{mx}, v{mx}, v{tm}")
        A(f"v_mul_f32 v{mx}, s38, v{mx}")
        for r in regs:
            A(f"v_fma_f32 v{r}, v{r}, s37, v{mx}"); A(f"v_exp_f32 v{r}, v{r}")
        P = PK + 6*qt
        A(f"v_cvt_pk_bf16_f32 v{P}, v{Sx0[qt]}, v{Sx0[qt]+1}"); A(f"v_cvt_pk_bf16_f32 v{P+1}, v{Sx0[qt]+2}, v{Sx0[qt]+3}")
        if qt:
            A(f"v_cvt_pk_bf16_f32 v{P+2}, v{Sx1}, v{Sx1+1}"); A(f"v_cvt_pk_bf16_f32 v{P+3}, v{Sx1+2}, v{Sx1+3}")
        else:
            A(f"v_mov_b32 v{P+2}, 0"); A(f"v_mov_b32 v{P+3}, 0")
        A(f"v_cvt_pk_bf16_f32 v{P+4}, v{Sm[qt]}, v{Sm[qt]+1}"); A(f"v_cvt_pk_bf16_f32 v{P+5}, v{Sm[qt]+2}, v{Sm[qt]+3}")
    for qt in range(2):
        P = PK + 6*qt
        A(f"v_mfma_f32_16x16x32_bf16 {v(DEN+4*qt,4)}, {v(ONE,4)}, {v(P,4)}, 0")
        for tl in range(8):
            A(f"v_mfma_f32_16x16x32_bf16 {v(O+32*qt+4*tl,4)}, {v(VF+4*tl,4)}, {v(P,4)}, 0")
    for qt in range(2):
        P = PK + 6*qt
        A(f"v_mfma_f32_16x16x16_bf16 {v(DEN+4*qt,4)}, {v(ONE,2)}, {v(P+4,2)}, {v(DEN+4*qt,4)}")
        for tl in range(8):
            d = v(O+32*qt+4*tl, 4)
            A(f"v_mfma_f32_16x16x16_bf16 {d}, {v(VMF+2*tl,2)}, {v(P+4,2)}, {d}")
    A.settle()
    A(f"v_and_b32 v{t}, 1, v{g}"); A(f"v_lshlrev_b32 v{t}, 5, v{t}"); A(f"v_lshrrev_b32 v{t+1}, 1, v{g}")
    A(f"v_lshl_add_u32 v{t}, v{t+1}, 4, v{t}"); A(f"v_lshl_add_u32 v{t}, v{n}, 13, v{t}")
    A(f"s_add_u32 s31, s30, {WS_O}")
    for qt in range(2):
        A(f"v_rcp_f32 v{t+1}, v{DEN+4*qt}")
        for p in range(4):
            b = O + 32*qt + 8*p
            for r in range(8):
                A(f"v_mul_f32 v{b+r}, v{b+r}, v{t+1}")
            A(f"v_cvt_pk_bf16_f32 v{b}, v{b}, v{b+1}"); A(f"v_cvt_pk_bf16_f32 v{b+1}, v{b+2}, v{b+3}")
            A(f"v_cvt_pk_bf16_f32 v{b+2}, v{b+4}, v{b+5}"); A(f"v_cvt_pk_bf16_f32 v{b+3}, v{b+6}, v{b+7}")
            A(f"v_permlane16_swap_b32 v{b}, v{b+2}"); A(f"v_permlane16_swap_b32 v{b+1}, v{b+3}")
            A(f"buffer_store_dwordx4 {v(b,4)}, v{t}, s[4:7], s31 offen offset:{64*p}{flags}")
        A(f"s_add_u32 s31, s31, {16*8192}")

def k_att(A, name="att_kernel"):
    begin(A, name, 512)
    load_srd(A, 4, 'ws')
    A("v_and_b32 v1, 63, v0"); A("v_lshrrev_b32 v2, 6, v0"); A("v_readfirstlane_b32 s20, v2")
    A("s_lshr_b32 s21, s2, 3")
    A("s_and_b32 s22, s2, 7"); A("s_lshl_b32 s22, s22, 2"); A("s_add_u32 s22, s22, s20")
    A("s_mul_i32 s23, s20, 10240")
    A("s_waitcnt lgkmcnt(0)")
    srd_fin(A, 4, WS_BYTES)
    body_att(A, 21, 22, 23)
    A("s_waitcnt vmcnt(0)")
    end(A, name)
    return name, (512, 256, 40960), descriptor(name)

def body_probe(A):
    A("s_getreg_b32 s20, hwreg(HW_REG_XCC_ID, 0, 4)"); A("s_and_b32 s20, s20, 7"); A("s_lshr_b32 s20, s20, 2")
    A("s_mov_b32 s21, 0x7fffffff"); A("s_mov_b32 s22, 0x7fffffff")
    A("v_mov_b32 v2, 0"); A("v_mov_b32 v3, -1")
    A("s_mov_b64 exec, 1")
    for rep in range(3):
        for c in range(2):
            A(f"s_mov_b32 s23, {WS_PG + c*8192 + rep*256}")
            A("buffer_store_dword v3, v2, s[4:7], s23 offen sc1"); A("s_waitcnt vmcnt(0)")
            A("s_memtime s[24:25]"); A("s_waitcnt lgkmcnt(0)")
            A("buffer_load_dword v4, v2, s[4:7], s23 offen sc1"); A("s_waitcnt vmcnt(0)")
            A("s_memtime s[26:27]"); A("s_waitcnt lgkmcnt(0)")
            A("s_sub_u32 s26, s26, s24"); A(f"s_min_u32 s{21+c}, s{21+c}, s26")
    A("s_cmp_lt_u32 s22, s21"); A("s_cselect_b32 s23, 1, 0"); A("s_xor_b32 s23, s23, s20")
    import chain
    if chain.OPT.get('flip'): A("s_xor_b32 s23, s23, 1")
    if chain.OPT.get('rt'):
        A("v_mov_b32 v5, s21"); A(f"s_mov_b32 s24, {WS_PAR + 4}"); A("buffer_store_dword v5, v2, s[4:7], s24 offen")
        A("v_mov_b32 v6, s22"); A(f"s_mov_b32 s24, {WS_PAR + 8}"); A("buffer_store_dword v6, v2, s[4:7], s24 offen")
        A("v_mov_b32 v7, s20"); A(f"s_mov_b32 s24, {WS_PAR + 12}"); A("buffer_store_dword v7, v2, s[4:7], s24 offen")
    A("v_mov_b32 v3, s23"); A(f"s_mov_b32 s24, {WS_PAR}")
    A("buffer_store_dword v3, v2, s[4:7], s24 offen"); A("s_waitcnt vmcnt(0)")
    A("s_mov_b64 exec, -1")

def k_pre(A, name="pre_kernel"):
    begin(A, name, 61)
    L = A.newlabel('probe')
    A("s_cmp_eq_u32 s2, 60"); A(f"s_cbranch_scc1 {L}")
    A("s_mov_b32 s20, s2")
    body_mod(A, 20)
    A(f"s_branch {name}_exit")
    A.label(L)
    load_srd(A, 4, 'ws'); A("s_waitcnt lgkmcnt(0)"); srd_fin(A, 4, WS_BYTES)
    A("v_lshrrev_b32 v2, 6, v0"); A("v_readfirstlane_b32 s20, v2")
    Lz = A.newlabel('zero')
    A("s_cmp_eq_u32 s20, 1"); A(f"s_cbranch_scc1 {Lz}")
    A("s_cmp_lg_u32 s20, 0"); A(f"s_cbranch_scc1 {name}_exit")
    body_probe(A)
    A(f"s_branch {name}_exit")
    A.label(Lz)
    A("v_and_b32 v1, 63, v0"); A("v_lshlrev_b32 v1, 4, v1")
    for r in range(4): A(f"v_mov_b32 v{4+r}, 0")
    A(f"s_mov_b32 s21, {WS_CNT}")
    for i in range(N_CNT * 128 // 1024):
        A("buffer_store_dwordx4 v[4:7], v1, s[4:7], s21 offen"); A("s_add_u32 s21, s21, 1024")
    A("s_waitcnt vmcnt(0)")
    end(A, name)
    return name, (61, 256, 1024), descriptor(name, 128, 128)

def k_chain(A, name="chain_kernel"):
    import chain
    begin(A, name, 256)
    chain.gen_roles(A, f"{name}_exit")
    chain.gen_chain(A, False, f"{name}_exit")
    end(A, name)
    return name, (256, 256, 163840), descriptor(name, 512, 256)

def k_main(A, name="main_kernel"):
    import chain
    from chain import wait_cnt, signal_cnt, S_C, S_W
    chain.OPT['merged'] = 1
    begin(A, name, 256)
    Lw = f"{name}_worker"; X = f"{name}_exit"
    chain.gen_roles(A, Lw)
    chain.gen_chain(A, bool(chain.OPT.get('tson')), X)
    A.label(Lw)
    S_WK, S_XV, S_T, S_R, S_BLK, S_IDX, S_J, S_T0, S_T1, S_SP = 70, 71, 72, 73, 74, 75, 76, 77, 78, 79
    A(f"s_mov_b32 {s(S_WK)}, {s(S_C)}")
    def wstamp(slot_reg_or_const, const=False):
        if not chain.OPT.get('rt'): return
        A(f"s_lshl_b32 s85, {s(S_WK)}, 6"); A("s_add_u32 s85, s85, 4096")
        if const: A(f"s_add_u32 s85, s85, {4*slot_reg_or_const}")
        else:
            A(f"s_lshl_b32 s84, {s(slot_reg_or_const)}, 2"); A("s_add_u32 s85, s85, s84")
        chain.rt_stamp(A, 85, True, 0 + 254)
    wstamp(15, True)
    A(f"s_lshr_b32 {s(S_XV)}, {s(S_WK)}, 5"); A(f"s_and_b32 {s(S_T)}, {s(S_WK)}, 31")
    def done_signal(kind_reg_off):
        L = A.newlabel('sig')
        A("s_waitcnt vmcnt(0)"); A("s_barrier")
        A(f"s_cmp_lg_u32 {s(S_W)}, 0"); A(f"s_cbranch_scc1 {L}")
        signal_cnt(A, kind_reg_off, 0 + 1)
        A.label(L)
    SW = 8
    A(f"s_lshl_b32 s12, {s(S_XV)}, 3"); A(f"s_and_b32 s13, {s(S_T)}, 7"); A("s_add_u32 s12, s12, s13")
    A("s_lshr_b32 s14, s12, 4")
    A("s_lshl_b32 s15, s14, 3"); A(f"s_add_u32 s15, s15, {KA['Wq']}")
    A(f"s_load_dwordx2 {s(SW,2)}, s[0:1], s15")
    A("s_and_b32 s12, s12, 15")
    G = Gemm(A, Op('kc', 128, 1280, 4), Op('km', 256, 8192, SW), 10, vb=2, sb=40)
    G.lanes(0)
    A("s_waitcnt lgkmcnt(0)")
    srd_fin(A, SW, 640*4096*2)
    G.setup()
    A(f"s_mov_b32 {s(S_R)}, 0")
    top = A.newlabel('qkv')
    A.label(top)
    A(f"s_lshl_b32 {s(S_BLK)}, {s(S_R)}, 2"); A(f"s_lshr_b32 s13, {s(S_T)}, 3"); A(f"s_add_u32 {s(S_BLK)}, {s(S_BLK)}, s13")
    A(f"s_mul_i32 {s(G.s_mo)}, {s(S_BLK)}, {128*1280}"); A(f"s_add_u32 {s(G.s_mo)}, {s(G.s_mo)}, {WS_H}")
    A(f"s_lshl_b32 {s(G.s_no)}, s12, 9")
    A(f"s_lshl_b32 s16, s14, 24"); A(f"s_add_u32 s16, s16, {WS_Q}")
    A(f"s_mul_i32 s17, {s(S_BLK)}, {128*8192}"); A("s_add_u32 s16, s16, s17")
    A("s_lshl_b32 s17, s12, 9"); A("s_add_u32 s16, s16, s17")
    G.run()
    G.epilogue(lambda tn, tm, d: None, None, 4, 8192, 16, ' sc1')
    G.reset_addrs()
    A("s_cmp_eq_u32 s14, 0"); A(f"s_cselect_b32 {s(S_T0)}, {CNT_Q}, {CNT_KV}")
    A(f"s_add_u32 {s(S_T0)}, {s(S_T0)}, {s(S_BLK)}"); A(f"s_lshl_b32 {s(S_T0)}, {s(S_T0)}, 7"); A(f"s_add_u32 {s(S_T0)}, {s(S_T0)}, {WS_CNT}")
    done_signal(S_T0)
    wstamp(S_R)
    A(f"s_add_u32 {s(S_R)}, {s(S_R)}, 1"); A(f"s_cmp_lt_u32 {s(S_R)}, 4"); A(f"s_cbranch_scc1 {top}")
    A(f"s_mov_b32 {s(S_R)}, 4")
    NT = 84
    NB1 = MLP1_HEAD // 2
    NM = 135
    TOT = 16 * NT + NM
    A(f"s_mov_b32 {s(S_IDX)}, {s(S_WK)}")
    if chain.OPT.get('nophase2'): A(f"s_branch {X}")
    t2 = A.newlabel('task'); Lwo = A.newlabel('wo'); Lfin = A.newlabel('fin'); Lnext = A.newlabel('next'); Lm1 = A.newlabel('m1'); Lreg = A.newlabel('reg')
    Lend = A.newlabel('wend')
    slp = chain.OPT.get('wslp', 4)
    A.label(t2)
    A(f"s_cmp_ge_u32 {s(S_IDX)}, {TOT}"); A(f"s_cbranch_scc1 {Lend}")
    cut = (NB1 + 1) * NT
    A(f"s_mov_b32 {s(S_T1)}, {s(S_IDX)}")
    A(f"s_cmp_lt_u32 {s(S_IDX)}, {cut}"); A(f"s_cbranch_scc1 {Lreg}")
    A(f"s_sub_u32 {s(S_J)}, {s(S_IDX)}, {cut}")
    A(f"s_cmp_lt_u32 {s(S_J)}, {NM}"); A(f"s_cbranch_scc1 {Lm1}")
    A(f"s_sub_u32 {s(S_T1)}, {s(S_IDX)}, {NM}")
    A.label(Lreg)
    A(f"s_mul_hi_u32 {s(S_BLK)}, {s(S_T1)}, {(2**32 + NT - 1)//NT:#x}")
    A(f"s_mul_i32 {s(S_T0)}, {s(S_BLK)}, {NT}"); A(f"s_sub_u32 {s(S_J)}, {s(S_T1)}, {s(S_T0)}")
    A(f"s_cmp_ge_u32 {s(S_J)}, 52"); A(f"s_cbranch_scc1 {Lfin}")
    A(f"s_cmp_ge_u32 {s(S_J)}, 32"); A(f"s_cbranch_scc1 {Lwo}")
    A(f"s_lshl_b32 s21, {s(S_BLK)}, 2"); A(f"s_lshr_b32 s22, {s(S_J)}, 3"); A("s_add_u32 s21, s21, s22")
    A(f"s_and_b32 s22, {s(S_J)}, 7"); A("s_lshl_b32 s22, s22, 2"); A(f"s_add_u32 s22, s22, {s(S_W)}")
    A(f"s_mul_i32 s23, {s(S_W)}, 10240")
    A(f"s_lshl_b32 {s(S_T0)}, {s(S_BLK)}, 7"); A(f"s_add_u32 {s(S_T0)}, {s(S_T0)}, {cnt_off(CNT_Q, 0)}")
    wait_cnt(A, S_T0, 16, 2, srd=4, spin=S_SP, tmp=S_T1, slp=slp)
    A(f"s_lshl_b32 {s(S_T0)}, {s(S_BLK)}, 7"); A(f"s_add_u32 {s(S_T0)}, {s(S_T0)}, {cnt_off(CNT_KV, 0)}")
    wait_cnt(A, S_T0, 32, 2, srd=4, spin=S_SP, tmp=S_T1, slp=slp)
    def wait_mem():
        Lp = A.newlabel('pw'); Ld = A.newlabel('pd')
        A(f"s_and_b32 {s(S_T0)}, {s(S_J)}, 7"); A(f"s_lshl_b32 {s(S_T0)}, {s(S_T0)}, 10"); A(f"s_add_u32 {s(S_T0)}, {s(S_T0)}, {cnt_off(CNT_MEM, 0)}")
        A("v_and_b32 v6, 7, v0"); A("v_lshlrev_b32 v6, 7, v6")
        A(f"s_mov_b32 {s(S_SP)}, 0x200000")
        A.label(Lp)
        A(f"buffer_load_dword v7, v6, s[4:7], {s(S_T0)} offen sc1"); A("s_waitcnt vmcnt(0)")
        A("v_cmp_ge_u32 vcc, s21, v7"); A(f"s_cbranch_vccz {Ld}")
        A(f"s_sleep {slp}"); A(f"s_sub_u32 {s(S_SP)}, {s(S_SP)}, 1"); A(f"s_cbranch_scc0 {Lp}")
        A.label(Ld)
    A("v_and_b32 v1, 63, v0")
    body_att(A, 21, 22, 23, flags=' sc1', ldfl=' sc1', wait_mem=wait_mem)
    A(f"s_and_b32 {s(S_T1)}, {s(S_J)}, 7"); A(f"s_lshr_b32 {s(S_T1)}, {s(S_T1)}, 1")
    A(f"s_lshl_b32 {s(S_T0)}, {s(S_BLK)}, 2"); A(f"s_add_u32 {s(S_T0)}, {s(S_T0)}, {s(S_T1)}")
    A(f"s_lshl_b32 {s(S_T0)}, {s(S_T0)}, 7"); A(f"s_add_u32 {s(S_T0)}, {s(S_T0)}, {cnt_off(CNT_ATT, 0)}")
    done_signal(S_T0)
    A(f"s_branch {Lnext}")
    A.label(Lwo)
    load_srd(A, 8, 'Wo')
    A(f"s_sub_u32 s16, {s(S_J)}, 32")
    A("s_mul_i32 s17, s16, 52"); A("s_lshr_b32 s17, s17, 8")
    A("s_mul_i32 s18, s17, 5"); A("s_sub_u32 s16, s16, s18")
    G2 = Gemm(A, Op('kc', 128, 8192, 4), Op('km', 128, 1280, 8), 16, vb=2, sb=40)
    G2.lanes(0)
    A("s_waitcnt lgkmcnt(0)")
    srd_fin(A, 8, 4096*1280)
    G2.setup()
    A(f"s_mul_i32 {s(G2.s_mo)}, {s(S_BLK)}, {128*8192}"); A(f"s_lshl_b32 s18, s17, 11"); A(f"s_add_u32 {s(G2.s_mo)}, {s(G2.s_mo)}, s18")
    A(f"s_add_u32 {s(G2.s_mo)}, {s(G2.s_mo)}, {WS_O}")
    A(f"s_mul_i32 {s(G2.s_no)}, s17, {1024*1280}"); A("s_lshl_b32 s18, s16, 8"); A(f"s_add_u32 {s(G2.s_no)}, {s(G2.s_no)}, s18")
    A(f"s_mul_i32 s19, s17, {2048*2560}"); A(f"s_mul_i32 s18, {s(S_BLK)}, {128*2560}"); A("s_add_u32 s19, s19, s18")
    A("s_lshl_b32 s18, s16, 9"); A("s_add_u32 s19, s19, s18"); A(f"s_add_u32 s19, s19, {WS_WP}")
    A(f"s_lshl_b32 {s(S_T0)}, {s(S_BLK)}, 2"); A(f"s_add_u32 {s(S_T0)}, {s(S_T0)}, s17")
    A(f"s_lshl_b32 {s(S_T0)}, {s(S_T0)}, 7"); A(f"s_add_u32 {s(S_T0)}, {s(S_T0)}, {cnt_off(CNT_ATT, 0)}")
    G2.run(' sc1', between=lambda: wait_cnt(A, S_T0, 8, G2.tmp + 8, srd=4, spin=S_SP, tmp=S_T1, slp=slp))
    G2.store_f32(4, 2560, 19, ' sc1')
    A(f"s_lshl_b32 {s(S_T0)}, {s(S_BLK)}, 7"); A(f"s_add_u32 {s(S_T0)}, {s(S_T0)}, {cnt_off(CNT_WOP, 0)}")
    done_signal(S_T0)
    A(f"s_branch {Lnext}")
    A.label(Lfin)
    load_srd(A, 12, 'x')
    A(f"s_sub_u32 s16, {s(S_J)}, 52"); A("s_lshl_b32 s16, s16, 2"); A(f"s_lshl_b32 s17, {s(S_BLK)}, 7"); A("s_add_u32 s16, s16, s17")
    A(f"s_add_u32 s20, s16, {s(S_W)}")
    A("v_and_b32 v1, 63, v0")
    A("s_waitcnt lgkmcnt(0)")
    srd_fin(A, 12, 2048*1280)
    A(f"s_lshl_b32 {s(S_T0)}, {s(S_BLK)}, 7"); A(f"s_add_u32 {s(S_T0)}, {s(S_T0)}, {cnt_off(CNT_WOP, 0)}")
    body_fin(A, 20, 1, 12, wait=lambda: wait_cnt(A, S_T0, 20, 10, srd=4, spin=S_SP, tmp=S_T1, slp=slp))
    A(f"s_lshl_b32 {s(S_T0)}, {s(S_BLK)}, 7"); A(f"s_add_u32 {s(S_T0)}, {s(S_T0)}, {cnt_off(CNT_FIN, 0)}")
    done_signal(S_T0)
    A(f"s_branch {Lnext}")
    A.label(Lm1)
    load_srd(A, 8, 'w1')
    A(f"s_mul_hi_u32 s16, {s(S_J)}, 0x33333334"); A("s_mul_i32 s17, s16, 5"); A(f"s_sub_u32 s17, {s(S_J)}, s17")
    G3 = Gemm(A, Op('km', 128, 1280, 4), Op('km', 64, 3456, 8), MLP1_HEAD, vb=2, sb=40)
    G3.lanes(0)
    A("s_waitcnt lgkmcnt(0)")
    srd_fin(A, 8, 2048*3456)
    G3.setup()
    A(f"s_lshl_b32 {s(G3.s_mo)}, s17, 8"); A(f"s_add_u32 {s(G3.s_mo)}, {s(G3.s_mo)}, {WS_H2}")
    A(f"s_lshl_b32 {s(G3.s_no)}, s16, 7")
    A(f"s_mul_i32 s20, s17, {128*6912}"); A("s_lshl_b32 s21, s16, 8"); A("s_add_u32 s20, s20, s21"); A(f"s_add_u32 s20, s20, {WS_UP}")
    def wait_fin():
        for b in range(NB1):
            A(f"s_mov_b32 {s(S_T0)}, {cnt_off(CNT_FIN, b)}")
            wait_cnt(A, S_T0, 32, G3.tmp + 8, srd=4, spin=S_SP, tmp=S_T1, slp=slp)
    G3.run(' sc1', between=wait_fin)
    G3.store_f32(4, 6912, 20)
    A("s_waitcnt vmcnt(0)"); A("s_barrier")
    A.label(Lnext)
    wstamp(S_R)
    A(f"s_add_u32 {s(S_R)}, {s(S_R)}, 1")
    A(f"s_add_u32 {s(S_IDX)}, {s(S_IDX)}, 192")
    if chain.OPT.get('pref', 1):
        Lnp = A.newlabel('nopf')
        A(f"s_add_u32 {s(S_T0)}, {s(S_IDX)}, 192"); A(f"s_cmp_lt_u32 {s(S_T0)}, {TOT}"); A(f"s_cbranch_scc1 {Lnp}")
        A(f"s_cmp_ge_u32 {s(S_IDX)}, {TOT}"); A(f"s_cbranch_scc1 {Lnp}")
        load_srd(A, 8, 'w2'); load_srd(A, 12, 'w1')
        A("v_and_b32 v1, 255, v0"); A("v_lshlrev_b32 v1, 7, v1")
        A("s_waitcnt lgkmcnt(0)")
        srd_fin(A, 8, 1728*4096); srd_fin(A, 12, 2048*3456)
        A(f"s_mul_i32 {s(S_T0)}, {s(S_WK)}, {2*32768}")
        for i in range(2):
            A(f"buffer_load_dword v{2+i}, v1, s[8:11], {s(S_T0)} offen"); A(f"s_add_u32 {s(S_T0)}, {s(S_T0)}, 32768")
        A(f"s_mul_i32 {s(S_T0)}, {s(S_WK)}, 32768"); A(f"s_add_u32 {s(S_T0)}, {s(S_T0)}, {MLP1_HEAD*64*3456}")
        A(f"buffer_load_dword v4, v1, s[12:15], {s(S_T0)} offen")
        A("s_waitcnt vmcnt(0)")
        A.label(Lnp)
    A(f"s_branch {t2}")
    A.label(Lend)
    end(A, name)
    return name, (256, 256, 163840), descriptor(name, 512, 256)
```

```python
KA = dict(x=0, mem0=8, Wq=16, Wk=24, Wv=32, Wo=40, seg=48, Bx=56, w1=64, b1=72, w2=80, b2=88, c=96, wmod=104, out=112, dbg=120, ws=128)
WS_BYTES = 0x10000000
WS_MOD = 0x0000000
WS_H   = 0x0100000
WS_X1  = 0x0400000
WS_H2  = 0x0700000
WS_U   = 0x0A00000
WS_PG  = 0x5800000
WS_RS  = 0x5C00000
WS_AGB = 0x5E00000
WS_MEM = 0x5E40000
WS_TS  = 0x5F00000
WS_Q   = 0x1000000
WS_K   = 0x2000000
WS_V   = 0x3000000
WS_O   = 0x4000000
WS_KM  = 0x5000000
WS_VM  = 0x5400000
INVALID = 0x40000000
SRD3 = 0x00020000
WS_PAR = 0x00F0000
WS_CNT = 0x00C0000
CNT_KV, CNT_Q, CNT_WOP, CNT_FIN, CNT_MEM, CNT_ATT = 0, 16, 32, 48, 64, 128
CNT_LN = 192
N_CNT = 208
def cnt_off(kind, i=0):
    return WS_CNT + (kind + i) * 128
WS_WP  = 0x6800000
WS_UP  = 0x7E00000
```

```python
import sys, kernels as K, chain
NAME = "adaLN_cond__memory_aug_recurrent_mem_tr__mixer_token_mlp__prompt"
ref = open(f"cdna_kernels/{NAME}.s.ref").read().split('\n')
hdr = []
for ln in ref:
    if ln.startswith('; @launch') or ln.startswith('; Override') or ln.startswith('; grid='): continue
    if not ln.startswith(';'): break
    hdr.append(ln)
opts = dict(kv.split('=') for kv in sys.argv[2:] if '=' in kv)
chain.OPT.update({k: int(v) for k, v in opts.items()})
for k_, v_ in dict(nrs=2, nex=3, nag=2, pre_rs=2, pre_ex=4, pre_ag=2, gap_rs=2, gap_ex=3, gap_ag=0).items(): chain.OPT.setdefault(k_, v_)
if opts.get('krt') == '1': K.KRT['on'] = True
if opts.get('seq') == '1':
    ks = [K.k_pre, K.k_ln1, K.k_qkv, K.k_chain, K.k_att, K.k_wo, K.k_ln2, K.k_mlp1_full, K.k_mlp2]
else:
    ks = [K.k_main, K.k_mlp1, K.k_mlp2]
txt, pads = K.assemble(ks, header=hdr)
open(sys.argv[1], 'w').write(txt)
print("lines", txt.count('\n'), "pads", pads, "bytes", len(txt))
```

```python
from asm import *
from layout import *

LDS_WO = 0
LDS_M = 81920
LDS_Q = 97280
LDS_VM = 101376
LDS_K = 114688
LDS_V = 131072
RAW_WO = 81920
LDS_DUMMY = 139264
RS_SLOT = 0x100000
PG_SLOT = 0x20000
AG_SLOT = 0x8000

DBG_TICKET = 0
DBG_OTHER = 8
DBG_INIT = 9

S_WS = 4
S_T0 = 8
S_T1 = 12
S_T2 = 16
S_T3 = 20
S_DBG = 24
S_W, S_X, S_C, S_H, S_HF = 26, 27, 28, 29, 30
S_STEP, S_FAST = 31, 32
S_AGO, S_RSS, S_RSL, S_RSL1, S_PGP = 33, 34, 35, 36, 37
S_KO, S_VO, S_KMO = 38, 39, 40
S_A, S_B, S_C2, S_D = 41, 42, 43, 44
S_SPIN = 45
S_TS = 46
S_TSO = 48
S_ISRED, S_UNIT, S_TAG, S_PAR = 56, 57, 58, 59
S_AGS, S_AGR = 54, 55
S_PICK = 80
S_PROG = 78
S_MK, S_MV = 76, 77
S_KB = 49

V_AG, V_LMW, V_LMR, V_IDX, V_QW, V_QR, V_KR, V_VR = 0, 1, 2, 3, 4, 5, 6, 7
V_VMW, V_WOR, V_RSS, V_RSL0, V_RSL2, V_PGP, V_KD0, V_KD1 = 8, 9, 10, 11, 12, 13, 14, 15
V_VD, V_KMS, V_VMS, V_VMR = 16, 17, 18, 19
V_AG2, V_LMW2, V_AGS, V_WK = 20, 21, 22, 23
V_WV = 12
V_SELR, V_ONE, V_HALF = 24, 28, 32
RA = 34
RB = 74
RC = 94

def wreg(tile, ks):
    idx = tile * 10 + ks
    return a(idx * 8, 8) if idx < 32 else v(112 + (idx - 32) * 8, 8)
def wreg_half(tile, ks, pair):
    idx = tile * 10 + ks
    return a(idx * 8 + pair * 2, 2) if idx < 32 else v(112 + (idx - 32) * 8 + pair * 2, 2)

def srd(A, dst, karg, nbytes, tmp):
    A(f"s_load_dwordx2 {s(dst,2)}, s[0:1], {karg}")

def srd_fin(A, dst, nbytes):
    A(f"s_and_b32 {s(dst+1)}, {s(dst+1)}, 0xffff")
    A(f"s_mov_b32 {s(dst+2)}, {nbytes}")
    A(f"s_mov_b32 {s(dst+3)}, {SRD3:#x}")

NTS = 16
S_TSV = 60

def ts(A, slot, on):
    if not on:
        return
    A("s_waitcnt lgkmcnt(0)")
    A(f"s_memtime {s(S_TS,2)}")
    A("s_waitcnt lgkmcnt(0)")
    A(f"s_mov_b32 {s(S_TSV+slot)}, {s(S_TS)}")

def ts_flush(A, on, tmp):
    if not on:
        return
    A(f"v_mov_b32 {v(tmp+1)}, {s(S_TSO)}")
    for i in range(NTS):
        A(f"v_mov_b32 {v(tmp)}, {s(S_TSV+i)}")
        A(f"buffer_store_dword {v(tmp)}, {v(tmp+1)}, {s(S_WS,4)}, 0 offen offset:{i*4}")
        A("s_nop 0")

class Lds:
    def __init__(self, A):
        self.A = A; self.ops = []
    def op(self, text, tag=None):
        self.A(text); self.ops.append(tag)
    def wait(self, tag):
        idx = max(i for i, t in enumerate(self.ops) if t == tag)
        n = len(self.ops) - 1 - idx
        self.A(f"s_waitcnt lgkmcnt({min(n, 15)})")
        if n <= 15:
            self.ops = [None if i <= idx else t for i, t in enumerate(self.ops)]
    def drain(self):
        self.A("s_waitcnt lgkmcnt(0)"); self.ops = []

def poll(A, loads, regs, fill=None, pre=0):
    W = A.newlabel('pollw'); D = A.newlabel('polled')
    t = RC + 17
    for _ in range(pre):
        A("s_nop 15")
    for ld in loads:
        A(ld)
    A(f"s_mov_b32 {s(S_SPIN)}, 0x100000")
    if fill:
        fill()
    A.label(W)
    A("s_waitcnt vmcnt(0)")
    A(f"v_max3_u32 {v(t)}, {v(regs[0])}, {v(regs[1])}, {v(regs[2])}")
    rest = regs[3:]
    while len(rest) >= 2:
        A(f"v_max3_u32 {v(t)}, {v(t)}, {v(rest[0])}, {v(rest[1])}")
        rest = rest[2:]
    if rest:
        A(f"v_max_u32 {v(t)}, {v(t)}, {v(rest[0])}")
    A(f"v_cmp_eq_u32 vcc, -1, {v(t)}")
    A(f"s_cbranch_vccz {D}")
    for ld in loads:
        A(ld)
    A(f"s_sub_u32 {s(S_SPIN)}, {s(S_SPIN)}, 1")
    A(f"s_cbranch_scc0 {W}")
    A("s_waitcnt vmcnt(0)")
    A.label(D)

def ppoll(A, nsets, mk_loads, mk_check, on_done, pre=0, gap=0, fill=None, gaps=None, spin=0x80000, on_timeout=None):
    nl = len(mk_loads(0))
    Dn = [A.newlabel('pd') for _ in range(nsets)]; E = A.newlabel('pe'); top = A.newlabel('pt')
    for _ in range(pre):
        A("s_nop 15")
    for i in range(nsets):
        for ld in mk_loads(i):
            A(ld)
        if i == 0:
            A(f"s_mov_b32 {s(S_SPIN)}, {spin:#x}")
            if fill:
                fill()
        if i + 1 < nsets:
            g_ = gap if gaps is None else (gaps >> (4 * i)) & 15
            for _ in range(g_):
                A("s_nop 7")
    A.label(top)
    for i in range(nsets):
        A(f"s_waitcnt vmcnt({nl*(nsets-1)})")
        mk_check(i)
        A(f"s_cbranch_vccz {Dn[i]}")
        for ld in mk_loads(i):
            A(ld)
    A(f"s_sub_u32 {s(S_SPIN)}, {s(S_SPIN)}, 1")
    A(f"s_cbranch_scc0 {top}")
    A("s_waitcnt vmcnt(0)")
    if on_timeout:
        on_timeout()
    for i in range(nsets):
        A.label(Dn[i])
        on_done(i)
        if i + 1 < nsets:
            A(f"s_branch {E}")
    A.label(E)

def sentinel_check(A, regs):
    t = RC + 17
    A(f"v_max3_u32 {v(t)}, {v(regs[0])}, {v(regs[1])}, {v(regs[2])}")
    rest = regs[3:]
    while len(rest) >= 2:
        A(f"v_max3_u32 {v(t)}, {v(t)}, {v(rest[0])}, {v(rest[1])}")
        rest = rest[2:]
    if rest:
        A(f"v_max_u32 {v(t)}, {v(t)}, {v(rest[0])}")
    A(f"v_cmp_eq_u32 vcc, -1, {v(t)}")

def gen_roles(A, exit_label):
    A(f"s_load_dwordx2 {s(S_DBG,2)}, s[0:1], {KA['dbg']}")
    A(f"s_load_dwordx2 {s(S_WS,2)}, s[0:1], {KA['ws']}")
    A(f"s_getreg_b32 {s(S_X)}, hwreg(HW_REG_XCC_ID, 0, 4)")
    A(f"v_lshrrev_b32 v1, 6, v0")
    A(f"v_readfirstlane_b32 {s(S_W)}, v1")
    A(f"s_and_b32 {s(S_X)}, {s(S_X)}, 7")
    A("s_waitcnt lgkmcnt(0)")
    srd_fin(A, S_WS, WS_BYTES)
    Lw = A.newlabel('role_wait'); Lp = A.newlabel('role_pub'); Lov = A.newlabel('role_over')
    A(f"s_cmp_lg_u32 {s(S_W)}, 0")
    A(f"s_cbranch_scc1 {Lw}")
    A(f"s_lshl_b32 {s(S_A)}, {s(S_X)}, 2")
    A(f"v_mov_b32 v1, {s(S_A)}")
    A("v_mov_b32 v12, 1")
    A("s_mov_b64 exec, 1")
    A(f"global_atomic_add v3, v1, v12, {s(S_DBG,2)} sc0")
    A("s_waitcnt vmcnt(0)")
    A(f"v_readfirstlane_b32 {s(S_A)}, v3")
    A(f"s_cmp_ge_u32 {s(S_A)}, 32")
    A(f"s_cbranch_scc1 {Lov}")
    A(f"s_lshl_b32 {s(S_B)}, {s(S_X)}, 5")
    A(f"s_add_u32 {s(S_A)}, {s(S_A)}, {s(S_B)}")
    A(f"s_branch {Lp}")
    A.label(Lov)
    A(f"v_mov_b32 v1, {DBG_OTHER*4}")
    A(f"global_atomic_add v3, v1, v12, {s(S_DBG,2)} sc0")
    A("s_waitcnt vmcnt(0)")
    A(f"v_readfirstlane_b32 {s(S_D)}, v3")
    wait_all_tickets(A)
    Lf = A.newlabel('role_found')
    for x in range(8):
        A(f"v_readfirstlane_b32 {s(S_B)}, v{2+x}")
        A(f"s_min_u32 {s(S_B)}, {s(S_B)}, 32")
        A(f"s_sub_u32 {s(S_C2)}, 32, {s(S_B)}")
        A(f"s_add_u32 {s(S_A)}, {s(S_B)}, {s(S_D)}")
        A(f"s_add_u32 {s(S_A)}, {s(S_A)}, {32*x}")
        A(f"s_cmp_lt_u32 {s(S_D)}, {s(S_C2)}")
        A(f"s_cbranch_scc1 {Lf}")
        A(f"s_sub_u32 {s(S_D)}, {s(S_D)}, {s(S_C2)}")
    A.label(Lf)
    A.label(Lp)
    A("s_mov_b64 exec, -1")
    A(f"v_mov_b32 v1, 163836")
    A(f"v_mov_b32 v2, {s(S_A)}")
    A("ds_write_b32 v1, v2")
    A("s_waitcnt lgkmcnt(0)")
    A.label(Lw)
    A("s_barrier")
    A(f"v_mov_b32 v1, 163836")
    A("ds_read_b32 v2, v1")
    A("s_waitcnt lgkmcnt(0)")
    A(f"v_readfirstlane_b32 {s(S_A)}, v2")
    A("s_barrier")
    A(f"s_sub_u32 {s(S_C)}, {s(S_A)}, 64")
    A(f"s_cmp_ge_u32 {s(S_A)}, 64")
    A(f"s_cbranch_scc1 {exit_label}")
    A(f"s_lshr_b32 {s(S_X)}, {s(S_A)}, 5")
    A(f"s_and_b32 {s(S_C)}, {s(S_A)}, 31")

def wait_all_tickets(A, b=2):
    L = A.newlabel('tick'); D = A.newlabel('tickd')
    A(f"s_mov_b32 {s(S_SPIN)}, 0x100000")
    A(f"v_mov_b32 {v(b+9)}, 0")
    A.label(L)
    A(f"global_load_dwordx4 {v(b,4)}, {v(b+9)}, {s(S_DBG,2)} sc1")
    A(f"global_load_dwordx4 {v(b+4,4)}, {v(b+9)}, {s(S_DBG,2)} offset:16 sc1")
    A("s_waitcnt vmcnt(0)")
    A(f"v_add3_u32 {v(b+8)}, {v(b)}, {v(b+1)}, {v(b+2)}")
    A(f"v_add3_u32 {v(b+8)}, {v(b+8)}, {v(b+3)}, {v(b+4)}")
    A(f"v_add3_u32 {v(b+8)}, {v(b+8)}, {v(b+5)}, {v(b+6)}")
    A(f"v_add_u32 {v(b+8)}, {v(b+8)}, {v(b+7)}")
    A(f"v_readfirstlane_b32 {s(S_B)}, {v(b+8)}")
    A(f"s_cmp_ge_u32 {s(S_B)}, 256")
    A(f"s_cbranch_scc1 {D}")
    A("s_sleep 4")
    A(f"s_sub_u32 {s(S_SPIN)}, {s(S_SPIN)}, 1")
    A(f"s_cbranch_scc0 {L}")
    A.label(D)
    A(f"v_readfirstlane_b32 {s(S_B)}, {v(b)}")
    A(f"v_readfirstlane_b32 {s(S_C2)}, {v(b+1)}")

def wait_cnt(A, soff, target, t, srd=S_WS, spin=S_SPIN, tmp=S_A, slp=2):
    L = A.newlabel('cw'); D = A.newlabel('cd')
    A(f"s_mov_b32 {s(spin)}, 0x200000")
    A(f"v_mov_b32 {v(t)}, 0")
    A.label(L)
    A(f"buffer_load_dword {v(t+1)}, {v(t)}, {s(srd,4)}, {s(soff)} offen sc1")
    A("s_waitcnt vmcnt(0)")
    A(f"v_readfirstlane_b32 {s(tmp)}, {v(t+1)}")
    A(f"s_cmp_ge_u32 {s(tmp)}, {target}")
    A(f"s_cbranch_scc1 {D}")
    A(f"s_sleep {slp}")
    A(f"s_sub_u32 {s(spin)}, {s(spin)}, 1")
    A(f"s_cbranch_scc0 {L}")
    A.label(D)

def signal_cnt(A, soff, t, srd=S_WS, add=1):
    A(f"v_mov_b32 {v(t)}, 0")
    A(f"v_mov_b32 {v(t+1)}, {add}")
    A("s_mov_b64 exec, 1")
    A(f"buffer_atomic_add {v(t+1)}, {v(t)}, {s(srd,4)}, {s(soff)} offen")
    A("s_mov_b64 exec, -1")

def cstamp(A, i):
    if OPT.get('rt'):
        A(f"s_mov_b32 s85, {0xC000 + 4*i}")
        rt_stamp(A, 85, True, RB + 18)

def dbg_wait_zero(A, t):
    L = A.newlabel('zw'); D = A.newlabel('zd')
    A(f"s_mov_b32 {s(S_SPIN)}, 0x200000")
    A(f"v_mov_b32 {v(t)}, 132")
    A.label(L)
    A(f"global_load_dword {v(t+1)}, {v(t)}, {s(S_DBG,2)} sc1")
    A("s_waitcnt vmcnt(0)")
    A(f"v_readfirstlane_b32 {s(S_A)}, {v(t+1)}")
    A(f"s_cmp_ge_u32 {s(S_A)}, 1")
    A(f"s_cbranch_scc1 {D}")
    A("s_sleep 2")
    A(f"s_sub_u32 {s(S_SPIN)}, {s(S_SPIN)}, 1")
    A(f"s_cbranch_scc0 {L}")
    A.label(D)

def gen_prologue(A, tson):
    T = RA
    A("v_mov_b32 v110, v0")
    lane, n, g, t0, t1, t2, t3 = T, T+1, T+2, T+3, T+4, T+5, T+6
    M0R, M0C, M0D = RC, RC + 1, RC + 2
    A(f"s_lshr_b32 {s(S_H)}, {s(S_C)}, 1")
    A(f"s_lshl_b32 {s(S_A)}, {s(S_X)}, 4")
    A(f"s_add_u32 {s(S_H)}, {s(S_H)}, {s(S_A)}")
    A(f"s_and_b32 {s(S_HF)}, {s(S_C)}, 1")
    for d, k in ((S_T0, 'Wq'), (S_T1, 'Wk'), (S_T2, 'Wv'), (S_T3, 'Wo')):
        A(f"s_load_dwordx2 {s(d,2)}, s[0:1], {KA[k]}")
    A(f"v_and_b32 {v(lane)}, 63, v110")
    A(f"v_and_b32 {v(n)}, 15, {v(lane)}")
    A(f"v_lshrrev_b32 {v(g)}, 4, {v(lane)}")
    for i in range(4):
        A(f"v_mov_b32 {v(RB+i)}, -1")
    A(f"s_lshl_b32 {s(S_D)}, {s(S_X)}, 5")
    A(f"s_add_u32 {s(S_D)}, {s(S_D)}, {s(S_C)}")
    A(f"v_lshlrev_b32 {v(t0)}, 4, {v(lane)}")
    A(f"s_mul_i32 {s(S_A)}, {s(S_C)}, 20480")
    A(f"s_mul_i32 {s(S_B)}, {s(S_W)}, 5120")
    A(f"s_add_u32 {s(S_A)}, {s(S_A)}, {s(S_B)}")
    A(f"s_lshl_b32 {s(S_B)}, {s(S_X)}, 20")
    A(f"s_add_u32 {s(S_A)}, {s(S_A)}, {s(S_B)}")
    A(f"s_add_u32 {s(S_A)}, {s(S_A)}, {WS_RS}")
    for i in range(5):
        A(f"buffer_store_dwordx4 {v(RB,4)}, {v(t0)}, {s(S_WS,4)}, {s(S_A)} offen sc1")
        A(f"s_add_u32 {s(S_A)}, {s(S_A)}, 1024")
    A(f"s_lshl_b32 {s(S_A)}, {s(S_D)}, 12")
    A(f"s_lshl_b32 {s(S_B)}, {s(S_W)}, 10")
    A(f"s_add_u32 {s(S_A)}, {s(S_A)}, {s(S_B)}")
    A(f"s_add_u32 {s(S_A)}, {s(S_A)}, {WS_PG}")
    A(f"buffer_store_dwordx4 {v(RB,4)}, {v(t0)}, {s(S_WS,4)}, {s(S_A)} offen sc1")
    A(f"s_lshl_b32 {s(S_A)}, {s(S_D)}, 10")
    A(f"s_lshl_b32 {s(S_B)}, {s(S_W)}, 8")
    A(f"s_add_u32 {s(S_A)}, {s(S_A)}, {s(S_B)}")
    A(f"s_add_u32 {s(S_A)}, {s(S_A)}, {WS_AGB}")
    A(f"v_mov_b32 {v(t1)}, {INVALID:#x}")
    A(f"v_cmp_gt_u32 vcc, 16, {v(lane)}")
    A(f"v_cndmask_b32 {v(t1)}, {v(t1)}, {v(t0)}, vcc")
    A(f"buffer_store_dwordx4 {v(RB,4)}, {v(t1)}, {s(S_WS,4)}, {s(S_A)} offen sc1")
    A(f"v_lshrrev_b32 {v(t1)}, 1, {v(lane)}")
    A(f"v_lshlrev_b32 {v(t1)}, 14, {v(t1)}")
    A(f"v_and_b32 {v(t2)}, 1, {v(lane)}")
    A(f"v_lshl_add_u32 {v(t1)}, {v(t2)}, 13, {v(t1)}")
    A(f"v_mov_b32 {v(t2)}, {INVALID:#x}")
    A(f"v_cmp_gt_u32 vcc, 6, {v(lane)}")
    A(f"v_cndmask_b32 {v(t1)}, {v(t2)}, {v(t1)}, vcc")
    A(f"s_lshl_b32 {s(S_A)}, {s(S_D)}, 7")
    A(f"s_add_u32 {s(S_A)}, {s(S_A)}, {WS_PG + 0x40000}")
    A(f"buffer_store_dword {v(RB)}, {v(t1)}, {s(S_WS,4)}, {s(S_A)} offen sc1")
    A(f"s_load_dwordx2 {s(S_PICK,2)}, s[0:1], {KA['ws']}")
    A(f"s_mov_b32 {s(S_TSV+2)}, 0x7fffffff")
    A(f"s_mov_b32 {s(S_TSV+3)}, 0x7fffffff")
    A(f"s_mov_b32 {s(S_TSV+4)}, {s(S_A)}")
    A("s_waitcnt lgkmcnt(0)")
    for d in (S_T0, S_T1, S_T2, S_T3):
        srd_fin(A, d, 640 * 4096 * 2)
    def issue_raw_wo():
        A(f"s_lshl_b32 {s(S_A)}, {s(S_H)}, 1")
        A(f"s_add_u32 {s(S_A)}, {s(S_A)}, {s(S_HF)}")
        A(f"s_mul_i32 {s(S_A)}, {s(S_A)}, 81920")
        A(f"s_mul_i32 {s(S_B)}, {s(S_W)}, 20480")
        A(f"s_add_u32 {s(S_A)}, {s(S_A)}, {s(S_B)}")
        A(f"s_add_u32 {s(S_B)}, {s(S_B)}, {RAW_WO}")
        A(f"v_lshlrev_b32 {v(t0)}, 4, {v(lane)}")
        for i in range(20):
            A(f"s_mov_b32 m0, {s(S_B)}")
            A(f"s_add_u32 {s(S_B)}, {s(S_B)}, 1024")
            A(f"buffer_load_dwordx4 {v(t0)}, {s(S_T3,4)}, {s(S_A)} offen lds")
            A(f"s_add_u32 {s(S_A)}, {s(S_A)}, 1024")
    QD0, QD1, VD0, VD1, QR0, QR1, VR0 = T+8, T+9, T+10, T+11, T+12, T+13, T+14
    A(f"v_lshlrev_b32 {v(t1)}, 1, {v(g)}")
    A(f"v_xor_b32 {v(t2)}, {v(n)}, {v(t1)}")
    A(f"v_lshlrev_b32 {v(t2)}, 4, {v(t2)}")
    A(f"v_lshl_add_u32 {v(QD0)}, {v(g)}, 13, {v(t2)}")
    A(f"v_xor_b32 {v(QD1)}, 128, {v(QD0)}")
    A(f"s_lshl_b32 {s(S_A)}, {s(S_H)}, 8")
    A(f"s_lshl_b32 {s(S_B)}, {s(S_W)}, 17")
    A(f"s_add_u32 {s(S_A)}, {s(S_A)}, {s(S_B)}")
    A(f"v_add_u32 {v(QD0)}, {s(S_A)}, {v(QD0)}")
    A(f"v_add_u32 {v(QD1)}, {s(S_A)}, {v(QD1)}")
    A(f"v_and_b32 {v(t1)}, 7, {v(lane)}")
    A(f"v_and_b32 {v(t2)}, 1, {v(g)}")
    A(f"v_lshlrev_b32 {v(t2)}, 1, {v(t2)}")
    A(f"v_xor_b32 {v(t1)}, {v(t1)}, {v(t2)}")
    A(f"v_lshlrev_b32 {v(t1)}, 4, {v(t1)}")
    A(f"v_lshrrev_b32 {v(t2)}, 3, {v(lane)}")
    A(f"v_lshl_add_u32 {v(VD0)}, {v(t2)}, 13, {v(t1)}")
    A(f"v_xor_b32 {v(VD1)}, 64, {v(VD0)}")
    A(f"s_lshl_b32 {s(S_B)}, {s(S_HF)}, 7")
    A(f"s_add_u32 {s(S_A)}, {s(S_A)}, {s(S_B)}")
    A(f"v_add_u32 {v(VD0)}, {s(S_A)}, {v(VD0)}")
    A(f"v_add_u32 {v(VD1)}, {s(S_A)}, {v(VD1)}")
    rr, cc = T+15, T+16
    A(f"v_lshrrev_b32 {v(rr)}, 2, {v(n)}")
    A(f"v_and_b32 {v(cc)}, 3, {v(n)}")
    A(f"v_and_b32 {v(t1)}, 1, {v(g)}")
    A(f"v_lshl_add_u32 {v(t1)}, {v(t1)}, 2, {v(rr)}")
    A(f"v_lshlrev_b32 {v(t1)}, 1, {v(t1)}")
    A(f"v_lshrrev_b32 {v(t2)}, 1, {v(cc)}")
    A(f"v_xor_b32 {v(t1)}, {v(t1)}, {v(t2)}")
    A(f"v_lshlrev_b32 {v(t1)}, 4, {v(t1)}")
    A(f"v_and_b32 {v(t2)}, 1, {v(cc)}")
    A(f"v_lshl_add_u32 {v(t1)}, {v(t2)}, 3, {v(t1)}")
    A(f"v_lshl_add_u32 {v(t2)}, {v(g)}, 3, {v(rr)}")
    A(f"v_lshl_add_u32 {v(t1)}, {v(t2)}, 8, {v(t1)}")
    A(f"s_lshl_b32 {s(S_A)}, {s(S_W)}, 6")
    A(f"v_xor_b32 {v(QR0)}, {s(S_A)}, {v(t1)}")
    A(f"v_xor_b32 {v(QR1)}, 32, {v(QR0)}")
    A(f"v_and_b32 {v(t1)}, 1, {v(g)}")
    A(f"v_lshlrev_b32 {v(t1)}, 1, {v(t1)}")
    A(f"v_lshrrev_b32 {v(t3)}, 1, {v(rr)}")
    A(f"v_add_u32 {v(t1)}, {v(t1)}, {v(t3)}")
    A(f"v_lshlrev_b32 {v(t1)}, 1, {v(t1)}")
    A(f"v_lshrrev_b32 {v(t3)}, 1, {v(cc)}")
    A(f"v_xor_b32 {v(t1)}, {v(t1)}, {v(t3)}")
    A(f"v_lshlrev_b32 {v(t1)}, 4, {v(t1)}")
    A(f"v_and_b32 {v(t3)}, 1, {v(cc)}")
    A(f"v_lshl_add_u32 {v(t1)}, {v(t3)}, 3, {v(t1)}")
    A(f"v_lshl_add_u32 {v(t1)}, {v(t2)}, 7, {v(t1)}")
    A(f"s_lshl_b32 {s(S_A)}, {s(S_W)}, 5")
    A(f"v_xor_b32 {v(VR0)}, {s(S_A)}, {v(t1)}")
    A(f"v_add_u32 {v(VR0)}, 32768, {v(VR0)}")

    def lane_constants():
        g1, g2 = T+20, T+21
        A(f"v_and_b32 {v(g1)}, 1, {v(g)}")
        A(f"v_lshrrev_b32 {v(g2)}, 1, {v(g)}")
        A(f"s_mul_i32 {s(S_A)}, {s(S_W)}, 160")
        A(f"v_lshl_add_u32 {v(t1)}, {v(g)}, 4, {v(n)}")
        A(f"v_add_u32 {v(t1)}, {s(S_A)}, {v(t1)}")
        A(f"v_lshrrev_b32 {v(t2)}, 3, {v(t1)}")
        A(f"v_lshlrev_b32 {v(t2)}, 12, {v(t2)}")
        A(f"v_and_b32 {v(t3)}, 7, {v(t1)}")
        A(f"v_lshl_add_u32 {v(t2)}, {v(t3)}, 4, {v(t2)}")
        A(f"s_lshl_b32 {s(S_B)}, {s(S_C)}, 7")
        A(f"v_add_u32 {v(t2)}, {s(S_B)}, {v(t2)}")
        A(f"v_mov_b32 {v(T+22)}, {INVALID:#x}")
        A(f"v_cmp_gt_u32 vcc, 2, {v(g)}")
        A(f"v_cndmask_b32 {v(V_RSS)}, {v(T+22)}, {v(t2)}, vcc")
        A(f"v_add_u32 {v(t1)}, {s(S_A)}, {v(lane)}")
        A(f"v_lshlrev_b32 {v(V_AG)}, 4, {v(t1)}")
        A(f"v_mov_b32 {v(T+22)}, {INVALID:#x}")
        A(f"v_cmp_gt_u32 vcc, 32, {v(lane)}")
        A(f"v_cndmask_b32 {v(V_AG2)}, {v(T+22)}, {v(V_AG)}, vcc")
        A(f"s_mul_i32 {s(S_A)}, {s(S_W)}, 3840")
        A(f"s_add_u32 {s(S_A)}, {s(S_A)}, {LDS_M}")
        A(f"s_movk_i32 {s(S_B)}, 384")
        A(f"v_mul_lo_u32 {v(t3)}, {v(g)}, {s(S_B)}")
        A(f"v_lshl_add_u32 {v(t3)}, {v(n)}, 4, {v(t3)}")
        A(f"v_add_u32 {v(V_LMW)}, {s(S_A)}, {v(t3)}")
        A(f"v_lshlrev_b32 {v(t3)}, 4, {v(lane)}")
        A(f"v_add_u32 {v(t3)}, {LDS_DUMMY - 3072}, {v(t3)}")
        A(f"v_cndmask_b32 {v(V_LMW2)}, {v(t3)}, {v(V_LMW)}, vcc")
        A(f"v_mul_lo_u32 {v(t3)}, {v(g)}, {s(S_B)}")
        A(f"v_lshrrev_b32 {v(t2)}, 1, {v(rr)}")
        A(f"v_lshl_add_u32 {v(t3)}, {v(t2)}, 6, {v(t3)}")
        A(f"v_lshrrev_b32 {v(t2)}, 1, {v(cc)}")
        A(f"v_lshl_add_u32 {v(t3)}, {v(t2)}, 5, {v(t3)}")
        A(f"v_and_b32 {v(t2)}, 1, {v(rr)}")
        A(f"v_lshl_add_u32 {v(t3)}, {v(t2)}, 4, {v(t3)}")
        A(f"v_and_b32 {v(t2)}, 1, {v(cc)}")
        A(f"v_lshl_add_u32 {v(t3)}, {v(t2)}, 3, {v(t3)}")
        A(f"v_add_u32 {v(V_LMR)}, {LDS_M}, {v(t3)}")
        A(f"v_mov_b32 {v(t2)}, 0x4444")
        A(f"v_mov_b32 {v(t3)}, 0xeeee")
        A(f"v_cmp_gt_u32 vcc, 8, {v(n)}")
        A(f"v_cndmask_b32 {v(V_IDX)}, {v(t3)}, {v(t2)}, vcc")
        A(f"s_lshl_b32 {s(S_A)}, {s(S_W)}, 9")
        A(f"s_add_u32 {s(S_A)}, {s(S_A)}, {LDS_Q}")
        A(f"v_lshl_add_u32 {v(t2)}, {v(g2)}, 4, {v(n)}")
        A(f"v_lshlrev_b32 {v(t2)}, 4, {v(t2)}")
        A(f"v_lshl_add_u32 {v(t2)}, {v(g1)}, 3, {v(t2)}")
        A(f"v_add_u32 {v(V_QW)}, {s(S_A)}, {v(t2)}")
        A(f"v_lshl_add_u32 {v(t2)}, {v(g)}, 3, {v(rr)}")
        A(f"v_lshlrev_b32 {v(t2)}, 4, {v(t2)}")
        A(f"v_and_b32 {v(t3)}, 1, {v(cc)}")
        A(f"v_lshl_add_u32 {v(t2)}, {v(t3)}, 3, {v(t2)}")
        A(f"v_add_u32 {v(V_QR)}, {LDS_Q}, {v(t2)}")
        A(f"v_xor_b32 {v(t2)}, {v(g)}, {v(n)}")
        A(f"v_lshlrev_b32 {v(t2)}, 4, {v(t2)}")
        A(f"v_lshl_add_u32 {v(t2)}, {v(n)}, 8, {v(t2)}")
        A(f"v_add_u32 {v(V_KR)}, {LDS_K}, {v(t2)}")
        A(f"v_lshl_add_u32 {v(t2)}, {v(g)}, 2, {v(rr)}")
        A(f"v_and_b32 {v(t3)}, 6, {v(t2)}")
        A(f"v_lshrrev_b32 {v(t1)}, 1, {v(cc)}")
        A(f"v_xor_b32 {v(t3)}, {v(t3)}, {v(t1)}")
        A(f"v_lshlrev_b32 {v(t3)}, 4, {v(t3)}")
        A(f"v_lshl_add_u32 {v(t3)}, {v(t2)}, 7, {v(t3)}")
        A(f"v_and_b32 {v(t1)}, 1, {v(cc)}")
        A(f"v_lshl_add_u32 {v(t3)}, {v(t1)}, 3, {v(t3)}")
        A(f"v_add_u32 {v(V_VR)}, {LDS_V}, {v(t3)}")
        A(f"v_lshlrev_b32 {v(t2)}, 3, {v(lane)}")
        A(f"v_add_u32 {v(V_VMR)}, {LDS_VM}, {v(t2)}")
        A(f"s_lshl_b32 {s(S_A)}, {s(S_W)}, 9")
        A(f"v_add_u32 {v(V_VMW)}, {s(S_A)}, {v(V_VMR)}")
        A(f"s_lshl_b32 {s(S_A)}, {s(S_W)}, 5")
        A(f"s_add_u32 {s(S_UNIT)}, {s(S_A)}, {s(S_C)}")
        A(f"s_cmp_lt_u32 {s(S_UNIT)}, 80")
        A(f"s_cselect_b32 {s(S_ISRED)}, 1, 0")
        A(f"s_min_u32 {s(S_UNIT)}, {s(S_UNIT)}, 79")
        A(f"v_lshrrev_b32 {v(t1)}, 3, {v(n)}")
        A(f"v_lshl_add_u32 {v(t1)}, {v(t1)}, 2, {v(g)}")
        A(f"v_lshlrev_b32 {v(t1)}, 7, {v(t1)}")
        A(f"v_and_b32 {v(t2)}, 7, {v(n)}")
        A(f"v_lshl_add_u32 {v(t1)}, {v(t2)}, 4, {v(t1)}")
        A(f"s_lshl_b32 {s(S_A)}, {s(S_UNIT)}, 12")
        A(f"v_add_u32 {v(V_RSL0)}, {s(S_A)}, {v(t1)}")
        A(f"s_lshr_b32 {s(S_A)}, {s(S_UNIT)}, 5")
        A(f"s_lshl_b32 {s(S_A)}, {s(S_A)}, 14")
        A(f"s_and_b32 {s(S_B)}, {s(S_UNIT)}, 31")
        A(f"s_lshl_b32 {s(S_B)}, {s(S_B)}, 8")
        A(f"s_add_u32 {s(S_A)}, {s(S_A)}, {s(S_B)}")
        A(f"v_lshlrev_b32 {v(t1)}, 7, {v(g)}")
        A(f"v_lshl_add_u32 {v(t1)}, {v(n)}, 4, {v(t1)}")
        A(f"v_add_u32 {v(t1)}, {s(S_A)}, {v(t1)}")
        A(f"v_cmp_gt_u32 vcc, 8, {v(n)}")
        A(f"v_cndmask_b32 {v(t1)}, {v(T+22)}, {v(t1)}, vcc")
        A(f"v_cmp_gt_u32 vcc, 2, {v(g)}")
        A(f"v_cndmask_b32 {v(V_PGP)}, {v(T+22)}, {v(t1)}, vcc")
        A(f"s_lshl_b32 {s(S_A)}, {s(S_UNIT)}, 7")
        A(f"v_lshlrev_b32 {v(t1)}, 4, {v(lane)}")
        A(f"v_add_u32 {v(t1)}, {s(S_A)}, {v(t1)}")
        A(f"v_cmp_gt_u32 vcc, 8, {v(lane)}")
        A(f"v_cndmask_b32 {v(V_AGS)}, {v(T+22)}, {v(t1)}, vcc")
        A(f"s_lshl_b32 {s(S_A)}, {s(S_W)}, 3")
        for ii, dst in ((0, V_KD0), (1, V_KD1)):
            A(f"v_add_u32 {v(t1)}, {s(S_A)}, {v(g)}")
            if ii:
                A(f"v_add_u32 {v(t1)}, 4, {v(t1)}")
            A(f"v_and_b32 {v(t2)}, 15, {v(t1)}")
            A(f"v_xor_b32 {v(t2)}, {v(t2)}, {v(n)}")
            A(f"v_lshlrev_b32 {v(t2)}, 4, {v(t2)}")
            A(f"v_lshl_add_u32 {v(dst)}, {v(t1)}, 13, {v(t2)}")
        A(f"s_lshl_b32 {s(S_B)}, {s(S_H)}, 8")
        A(f"v_add_u32 {v(V_KD0)}, {s(S_B)}, {v(V_KD0)}")
        A(f"v_add_u32 {v(V_KD1)}, {s(S_B)}, {v(V_KD1)}")
        A(f"v_lshrrev_b32 {v(t1)}, 3, {v(lane)}")
        A(f"v_add_u32 {v(t1)}, {s(S_A)}, {v(t1)}")
        A(f"v_and_b32 {v(t2)}, 6, {v(t1)}")
        A(f"v_and_b32 {v(t3)}, 7, {v(lane)}")
        A(f"v_xor_b32 {v(t2)}, {v(t2)}, {v(t3)}")
        A(f"v_lshlrev_b32 {v(t2)}, 4, {v(t2)}")
        A(f"v_lshl_add_u32 {v(V_VD)}, {v(t1)}, 13, {v(t2)}")
        A(f"s_lshl_b32 {s(S_C2)}, {s(S_HF)}, 7")
        A(f"s_add_u32 {s(S_B)}, {s(S_B)}, {s(S_C2)}")
        A(f"v_add_u32 {v(V_VD)}, {s(S_B)}, {v(V_VD)}")
        A(f"s_lshl_b32 {s(S_PROG)}, {s(S_X)}, 5")
        A(f"s_add_u32 {s(S_PROG)}, {s(S_PROG)}, {s(S_C)}")
        A(f"s_lshl_b32 {s(S_PROG)}, {s(S_PROG)}, 7")
        A(f"s_add_u32 {s(S_PROG)}, {s(S_PROG)}, {cnt_off(CNT_MEM, 0)}")
        A(f"s_lshl_b32 {s(S_MK)}, {s(S_W)}, 11")
        A(f"s_add_u32 {s(S_MK)}, {s(S_MK)}, {LDS_K}")
        A(f"s_lshl_b32 {s(S_MV)}, {s(S_W)}, 10")
        A(f"s_add_u32 {s(S_MV)}, {s(S_MV)}, {LDS_V}")
        A(f"v_lshrrev_b32 {v(t1)}, 1, {v(lane)}")
        A(f"v_lshlrev_b32 {v(t1)}, 13, {v(t1)}")
        A(f"v_and_b32 {v(t2)}, 1, {v(lane)}")
        A(f"v_lshl_add_u32 {v(t1)}, {v(t2)}, 7, {v(t1)}")
        A(f"s_lshl_b32 {s(S_B)}, {s(S_H)}, 8")
        A(f"v_add_u32 {v(V_WK)}, {s(S_B)}, {v(t1)}")
        A(f"s_lshl_b32 {s(S_C2)}, {s(S_HF)}, 7")
        A(f"s_add_u32 {s(S_B)}, {s(S_B)}, {s(S_C2)}")
        A(f"v_lshlrev_b32 {v(t1)}, 13, {v(lane)}")
        A(f"v_add_u32 {v(t1)}, {s(S_B)}, {v(t1)}")
        A(f"v_mov_b32 {v(t2)}, {INVALID:#x}")
        A(f"v_cmp_gt_u32 vcc, 32, {v(lane)}")
        A(f"v_cndmask_b32 {v(V_WV)}, {v(t2)}, {v(t1)}, vcc")
        A(f"s_lshl_b32 {s(S_A)}, {s(S_H)}, 11")
        A(f"s_lshl_b32 {s(S_B)}, {s(S_HF)}, 10")
        A(f"s_add_u32 {s(S_A)}, {s(S_A)}, {s(S_B)}")
        A(f"v_lshlrev_b32 {v(t1)}, 4, {v(lane)}")
        A(f"v_add_u32 {v(V_KMS)}, {s(S_A)}, {v(t1)}")
        A(f"v_lshlrev_b32 {v(t1)}, 9, {v(g)}")
        A(f"v_lshl_add_u32 {v(t1)}, {v(n)}, 3, {v(t1)}")
        A(f"v_add_u32 {v(V_VMS)}, {LDS_VM}, {v(t1)}")
        A(f"v_and_b32 {v(t1)}, 7, {v(n)}")
        A(f"v_lshrrev_b32 {v(t2)}, 1, {v(t1)}")
        A(f"v_and_b32 {v(t3)}, 1, {v(t1)}")
        A(f"v_lshlrev_b32 {v(t3)}, 4, {v(t3)}")
        A(f"v_mov_b32 {v(T+23)}, 0x3f80")
        A(f"v_lshlrev_b32 {v(t3)}, {v(t3)}, {v(T+23)}")
        A(f"v_lshrrev_b32 {v(t1)}, 3, {v(n)}")
        for d in range(4):
            A(f"v_cmp_eq_u32 vcc, {d}, {v(t2)}")
            A(f"v_cndmask_b32 {v(T+24)}, 0, {v(t3)}, vcc")
            A(f"v_cmp_eq_u32 vcc, 0, {v(t1)}")
            A(f"v_cndmask_b32 {v(V_SELR+d)}, 0, {v(T+24)}, vcc")
        for d in range(4):
            A(f"v_mov_b32 {v(V_ONE+d)}, 0x3f803f80")
        for d in range(2):
            A(f"v_mov_b32 {v(V_HALF+d)}, 0x3f003f00")
        A(f"s_load_dwordx2 {s(84,2)}, s[0:1], {KA['mem0']}")
        A("s_waitcnt lgkmcnt(0)")
        srd_fin(A, 84, 8 * 640 * 2)
        A(f"v_lshrrev_b32 {v(M0R)}, 5, v110")
        A(f"v_and_b32 {v(M0C)}, 31, v110")
        A(f"v_mul_u32_u24 {v(M0C)}, 20, {v(M0C)}")
        A(f"v_mul_u32_u24 {v(t3)}, 1280, {v(M0R)}")
        A(f"v_lshl_add_u32 {v(t3)}, {v(M0C)}, 1, {v(t3)}")
        for j in range(10):
            A(f"buffer_load_dword {v(M0D+j)}, {v(t3)}, {s(84,4)}, 0 offen offset:{j*4}")
    def issue_stage(ks):
        sb = (ks & 3) * 40960
        A(f"s_lshl_b32 {s(S_B)}, {s(S_W)}, 12")
        for mat, (sr, off) in enumerate(((S_T0, 0), (S_T1, 16384))):
            for ii in range(4):
                A(f"s_add_u32 m0, {s(S_B)}, {sb + off + ii*1024}")
                A(f"s_mov_b32 {s(S_A)}, {(ks*64 + 4*ii) * 8192}")
                if OPT.get('diag_nodup'):
                    A(f"s_cmp_eq_u32 {s(S_HF)}, 1"); A(f"s_cmov_b32 {s(S_A)}, {INVALID:#x}")
                A(f"buffer_load_dwordx4 {v(QD0 if ii < 2 else QD1)}, {s(sr,4)}, {s(S_A)} offen lds")
        A(f"s_lshl_b32 {s(S_B)}, {s(S_W)}, 11")
        for i in range(2):
            A(f"s_add_u32 m0, {s(S_B)}, {sb + 32768 + i*1024}")
            A(f"s_mov_b32 {s(S_A)}, {(ks*64 + 8*i) * 8192}")
            A(f"buffer_load_dwordx4 {v(VD0 if i == 0 else VD1)}, {s(S_T2,4)}, {s(S_A)} offen lds")
    for st in range(4):
        issue_stage(st)
    lane_constants()
    ad0, ad1, ad2 = T+17, T+18, T+19
    for ks in range(10):
        sb = (ks & 3) * 40960
        younger = 10 * (min(9, ks + 3) - ks) + (10 if ks <= 3 else 0) + (20 if ks >= 8 else 0)
        A(f"s_waitcnt vmcnt({younger})")
        A("s_barrier")
        if 2 <= ks < 8:
            Lq = A.newlabel('probe')
            cp = ks & 1; kq = (ks - 2) >> 1
            A(f"s_cmp_lg_u32 {s(S_W)}, 0")
            A(f"s_cbranch_scc1 {Lq}")
            A(f"s_add_u32 {s(S_A)}, {s(S_TSV+4)}, {kq*16384 + cp*8192}")
            A(f"s_memtime {s(S_TS,2)}")
            A("s_waitcnt lgkmcnt(0)")
            A(f"s_load_dword {s(S_B)}, {s(S_PICK,2)}, {s(S_A)}")
            A("s_waitcnt lgkmcnt(0)")
            A(f"s_memtime {s(S_TSV,2)}")
            A("s_waitcnt lgkmcnt(0)")
            A(f"s_sub_u32 {s(S_B)}, {s(S_TSV)}, {s(S_TS)}")
            A(f"s_min_u32 {s(S_TSV+2+cp)}, {s(S_TSV+2+cp)}, {s(S_B)}")
            A.label(Lq)
        if ks == 8:
            La = A.newlabel('arr')
            A(f"s_cmp_lg_u32 {s(S_W)}, 0")
            A(f"s_cbranch_scc1 {La}")
            A(f"s_cmp_lt_u32 {s(S_TSV+3)}, {s(S_TSV+2)}")
            A(f"s_cselect_b32 {s(S_A)}, 0x10001, 1")
            if OPT.get('picklog'):
                A(f"s_lshl_b32 {s(S_B)}, {s(S_D)}, 5"); A(f"s_add_u32 {s(S_B)}, {s(S_B)}, {WS_TS + 0x8000}")
                A(f"v_mov_b32 {v(t1)}, {s(S_TSV+2)}"); A(f"v_mov_b32 {v(t2)}, {s(S_TSV+3)}")
                A(f"buffer_store_dwordx2 {v(t1,2)}, off, {s(S_WS,4)}, {s(S_B)}")
            A(f"v_mov_b32 {v(t1)}, {DBG_INIT*4}")
            A(f"v_mov_b32 {v(t2)}, {s(S_A)}")
            A("s_mov_b64 exec, 1")
            A(f"global_atomic_add {v(t1)}, {v(t2)}, {s(S_DBG,2)}")
            A("s_mov_b64 exec, -1")
            A.label(La)
        A(f"v_add_u32 {v(ad0)}, {sb}, {v(QR0)}")
        A(f"v_add_u32 {v(ad1)}, {sb}, {v(QR1)}")
        A(f"v_add_u32 {v(ad2)}, {sb}, {v(VR0)}")
        for mat in range(2):
            for tt in range(2):
                tile = mat * 2 + tt
                for hb in range(2):
                    for q in range(2):
                        A(f"ds_read_b64_tr_b16 {wreg_half(tile, ks, hb*2+q)}, {v(ad0 if tt == 0 else ad1)} offset:{mat*16384 + hb*8192 + q*1024}")
        for hb in range(2):
            for q in range(2):
                A(f"ds_read_b64_tr_b16 {wreg_half(4, ks, hb*2+q)}, {v(ad2)} offset:{hb*4096 + q*512}")
        A("s_waitcnt lgkmcnt(0)")
        if ks + 4 < 10:
            A("s_barrier")
            issue_stage(ks + 4)
        elif ks == 7:
            A("s_barrier")
            issue_raw_wo()
    A("s_waitcnt vmcnt(0)")
    A("s_barrier")
    cstamp(A, 0)
    A(f"v_lshl_add_u32 {v(t1)}, {v(g)}, 2, {v(rr)}")
    A(f"s_movk_i32 {s(S_A)}, 1280")
    A(f"v_mul_lo_u32 {v(t1)}, {v(t1)}, {s(S_A)}")
    A(f"v_lshl_add_u32 {v(t1)}, {v(cc)}, 3, {v(t1)}")
    A(f"s_mul_i32 {s(S_A)}, {s(S_W)}, 320")
    A(f"s_add_u32 {s(S_A)}, {s(S_A)}, {RAW_WO}")
    A(f"v_add_u32 {v(t1)}, {s(S_A)}, {v(t1)}")
    A(f"s_mul_i32 {s(S_A)}, {s(S_W)}, 20480")
    A(f"v_lshlrev_b32 {v(V_WOR)}, 4, {v(lane)}")
    A(f"v_add_u32 {v(V_WOR)}, {s(S_A)}, {v(V_WOR)}")
    A(f"v_add_u32 {v(t2)}, {32*1280}, {v(t1)}")
    buf = RA + 20
    for half in range(2):
        for tt in range(5*half, 5*half + 5):
            for kk in range(2):
                ad = t1 if kk == 0 else t2
                b = buf + (tt % 5) * 8 + kk * 4
                A(f"ds_read_b64_tr_b16 {v(b,2)}, {v(ad)} offset:{tt*32}")
                A(f"ds_read_b64_tr_b16 {v(b+2,2)}, {v(ad)} offset:{tt*32 + 16*1280}")
        A("s_waitcnt lgkmcnt(0)")
        for tt in range(5*half, 5*half + 5):
            for kk in range(2):
                A(f"ds_write_b128 {v(V_WOR)}, {v(buf + (tt % 5) * 8 + kk * 4,4)} offset:{tt*2048 + kk*1024}")
    A("s_waitcnt lgkmcnt(0)")
    A("s_barrier")
    cstamp(A, 1)
    for j in range(10):
        for hh in range(2):
            A(f"v_add_u32 {v(T+22)}, {2*j+hh}, {v(M0C)}")
            A(f"v_lshrrev_b32 {v(T+23)}, 4, {v(T+22)}")
            A(f"v_lshlrev_b32 {v(T+23)}, 7, {v(T+23)}")
            A(f"v_lshl_add_u32 {v(T+23)}, {v(T+22)}, 4, {v(T+23)}")
            A(f"v_lshl_add_u32 {v(T+23)}, {v(M0R)}, 1, {v(T+23)}")
            A(f"v_add_u32 {v(T+23)}, {LDS_M}, {v(T+23)}")
            A(f"{'ds_write_b16' if hh == 0 else 'ds_write_b16_d16_hi'} {v(T+23)}, {v(M0D+j)}")
    A(f"s_mov_b32 {s(S_STEP)}, 0")
    A(f"s_mov_b32 {s(S_KB)}, 0")
    A(f"s_mov_b32 {s(S_KO)}, {WS_K}")
    A(f"s_mov_b32 {s(S_VO)}, {WS_V}")
    if OPT.get('merged'):
        A(f"s_mov_b32 {s(S_B)}, {cnt_off(CNT_KV, 0)}")
        cstamp(A, 2)
        dbg_wait_zero(A, RB)
        wait_cnt(A, S_B, 64, RB)
        cstamp(A, 3)
    for d in kv_dma_list():
        for x in d: A(x)
    kv_advance(A)
    A(f"s_mul_i32 {s(S_A)}, {s(S_X)}, {80*4096}")
    A(f"s_add_u32 {s(S_RSL)}, {s(S_A)}, {WS_RS}")
    A(f"s_mul_i32 {s(S_A)}, {s(S_X)}, {3*16384}")
    A(f"s_add_u32 {s(S_PGP)}, {s(S_A)}, {WS_PG}")
    A(f"s_sub_u32 {s(S_A)}, {3*16384}, {s(S_A)}")
    A(f"s_add_u32 {s(S_AGO)}, {s(S_A)}, {WS_PG}")
    A(f"s_mul_i32 {s(S_A)}, {s(S_X)}, 10240")
    A(f"s_add_u32 {s(S_AGR)}, {s(S_A)}, {WS_AGB}")
    A(f"s_xor_b32 {s(S_AGS)}, {s(S_AGR)}, {AG_SLOT}")
    wait_all_tickets(A, RB)
    A(f"s_cmp_eq_u32 {s(S_X)}, 0")
    A(f"s_cselect_b32 {s(S_A)}, {s(S_B)}, {s(S_C2)}")
    A(f"s_cmp_ge_u32 {s(S_A)}, 32")
    A(f"s_cselect_b32 {s(S_FAST)}, 1, 0")
    L = A.newlabel('initw'); D = A.newlabel('initd')
    A(f"s_mov_b32 {s(S_SPIN)}, 0x100000")
    A(f"v_mov_b32 {v(t1)}, {DBG_INIT*4}")
    A.label(L)
    A(f"global_load_dword {v(t2)}, {v(t1)}, {s(S_DBG,2)} sc1")
    A("s_waitcnt vmcnt(0)")
    A(f"v_readfirstlane_b32 {s(S_A)}, {v(t2)}")
    A(f"s_and_b32 {s(S_B)}, {s(S_A)}, 0xffff")
    A(f"s_cmp_ge_u32 {s(S_B)}, 64")
    A(f"s_cbranch_scc1 {D}")
    A("s_sleep 2")
    A(f"s_sub_u32 {s(S_SPIN)}, {s(S_SPIN)}, 1")
    A(f"s_cbranch_scc0 {L}")
    A.label(D)
    A(f"s_lshr_b32 {s(S_B)}, {s(S_A)}, 16")
    A(f"s_cmp_ge_u32 {s(S_B)}, 32")
    A(f"s_cselect_b32 {s(S_B)}, 8192, 0")
    if OPT.get('flip'):
        A(f"s_xor_b32 {s(S_B)}, {s(S_B)}, 8192")
    A(f"s_add_u32 {s(S_AGO)}, {s(S_AGO)}, {s(S_B)}")
    A(f"s_add_u32 {s(S_PGP)}, {s(S_PGP)}, {s(S_B)}")
    A("s_waitcnt vmcnt(0) lgkmcnt(0)")
    A("s_barrier")

def kv_dma_list():
    return [[f"s_mov_b32 m0, {s(S_MK)}", "s_nop 0", f"buffer_load_dwordx4 {v(V_KD0)}, {s(S_WS,4)}, {s(S_KO)} offen sc1 lds"],
            [f"s_add_u32 m0, {s(S_MK)}, 1024", "s_nop 0", f"buffer_load_dwordx4 {v(V_KD1)}, {s(S_WS,4)}, {s(S_KO)} offen sc1 lds"],
            [f"s_mov_b32 m0, {s(S_MV)}", "s_nop 0", f"buffer_load_dwordx4 {v(V_VD)}, {s(S_WS,4)}, {s(S_VO)} offen sc1 lds"]]

def kv_advance(A):
    A(f"s_add_u32 {s(S_KO)}, {s(S_KO)}, {32*8192}")
    A(f"s_add_u32 {s(S_VO)}, {s(S_VO)}, {32*8192}")
    A(f"s_xor_b32 {s(S_MK)}, {s(S_MK)}, 8192")
    A(f"s_xor_b32 {s(S_MV)}, {s(S_MV)}, 4096")


SCALE_LOG2E = 0.08838834764831845 * 1.4426950408889634
S_NEGC, S_POSC = 50, 52

KMH = RC

def kmvm_prepare(A, L):
    t = RA
    A(f"v_and_b32 {v(t)}, 0x7f0, {v(V_KMS)}")
    A(f"v_add_u32 {v(t)}, {LDS_Q + 2048}, {v(t)}")
    L.op(f"ds_read_b128 {v(KMH,4)}, {v(t)}", 'km')
    for gq in range(4):
        L.op(f"ds_read_b64 {v(t+8+2*gq,2)}, {v(V_VMS)} offset:{gq*128}", 'vm')
    A(f"s_lshl_b32 {s(S_KMO)}, {s(S_STEP)}, 16")
    A(f"s_add_u32 {s(S_KMO)}, {s(S_KMO)}, {WS_KM}")
    L.wait('vm')
    u = t + 16
    for hq in range(2):
        for j in range(2):
            x, y = t + 8 + 2*hq + j, t + 12 + 2*hq + j
            A(f"v_lshlrev_b32 {v(u)}, 16, {v(x)}")
            A(f"v_and_b32 {v(u+1)}, 0xffff0000, {v(x)}")
            A(f"v_lshlrev_b32 {v(u+2)}, 16, {v(y)}")
            A(f"v_and_b32 {v(u+3)}, 0xffff0000, {v(y)}")
            A(f"v_add_f32 {v(u)}, {v(u)}, {v(u+2)}")
            A(f"v_add_f32 {v(u+1)}, {v(u+1)}, {v(u+3)}")
            A(f"v_cvt_pk_bf16_f32 {v(KMH+4+2*hq+j)}, {v(u)}, {v(u+1)}")

def kmvm_store(A):
    A(f"buffer_store_dwordx4 {v(KMH,4)}, {v(V_KMS)}, {s(S_WS,4)}, {s(S_KMO)} offen sc1")
    A(f"s_add_u32 {s(S_A)}, {s(S_KMO)}, {WS_VM - WS_KM}")
    A(f"buffer_store_dwordx4 {v(KMH+4,4)}, {v(V_KMS)}, {s(S_WS,4)}, {s(S_A)} offen sc1")

OPT = {}

def progress(A, sval, t):
    A(f"v_mov_b32 {v(t)}, {s(sval)}")
    A(f"buffer_store_dword {v(t)}, off, {s(S_WS,4)}, {s(S_PROG)} sc1")

def tail_side_work(A, L):
    if OPT.get('merged'):
        Lk = A.newlabel('nokv')
    kmvm_prepare(A, L)
    if OPT.get('merged'):
        A(f"s_add_u32 {s(S_C2)}, {s(S_STEP)}, 3")
        A(f"s_and_b32 {s(S_B)}, {s(S_C2)}, 3")
        A(f"s_cmp_lg_u32 {s(S_B)}, 0")
        A(f"s_cbranch_scc1 {Lk}")
        A(f"s_cmp_ge_u32 {s(S_C2)}, 64")
        A(f"s_cbranch_scc1 {Lk}")
        A(f"s_lshr_b32 {s(S_B)}, {s(S_C2)}, 2")
        A(f"s_lshl_b32 {s(S_B)}, {s(S_B)}, 7")
        A(f"s_add_u32 {s(S_B)}, {s(S_B)}, {cnt_off(CNT_KV, 0)}")
        wait_cnt(A, S_B, 64, RB + 4, slp=1)
        A.label(Lk)

def rt_stamp(A, soff_expr_reg, on, vt):
    if not on:
        return
    A("s_memrealtime s[86:87]")
    A("s_waitcnt lgkmcnt(0)")
    A(f"v_mov_b32 {v(vt)}, s86")
    A(f"s_add_u32 s87, {s(soff_expr_reg)}, {WS_TS}")
    A(f"v_mov_b32 {v(vt+1)}, s87")
    A(f"buffer_store_dword {v(vt)}, {v(vt+1)}, s[4:7], 0 offen")

def cut_tail(A, L, Ltop, exit_label):
    L.drain()
    for d in range(20):
        A(f"v_mov_b32 {v(RB+d)}, 0")
    A(f"s_add_u32 {s(S_STEP)}, {s(S_STEP)}, 1")
    A("s_barrier")
    A(f"s_cmp_lt_u32 {s(S_STEP)}, 1000")
    A(f"s_cbranch_scc1 {Ltop}")
    A("s_waitcnt vmcnt(0)")
    A(f"s_branch {exit_label}")

def gen_loop(A, tson, fast, exit_label, nsteps=64):
    sc = '' if fast else ' sc1'
    L = Lds(A)
    mA = RA
    Dq0, Dq1, Dk0, Dk1, Dv = RB, RB+4, RB+8, RB+12, RB+16
    Kx0, Kx1 = RC, RB
    Ltop = A.newlabel('step'); Llast = A.newlabel('last')
    A.label(Ltop)
    if tson:
        A(f"s_lshl_b32 {s(S_A)}, {s(S_STEP)}, 2")
        A(f"s_add_u32 {s(S_A)}, {s(S_A)}, {s(S_W)}")
        A(f"s_lshl_b32 {s(S_A)}, {s(S_A)}, 6")
        A(f"s_add_u32 {s(S_TSO)}, {s(S_A)}, {WS_TS}")
        A(f"s_or_b32 {s(S_A)}, {s(S_X)}, {s(S_C)}")
        A(f"s_cmp_eq_u32 {s(S_A)}, 0")
        A(f"s_cselect_b32 {s(S_TSO)}, {s(S_TSO)}, {INVALID:#x}")
    ts(A, 0, tson)
    if OPT.get('cut') == 0:
        return cut_tail(A, L, Ltop, exit_label)
    rd = [(f"ds_read_b64_tr_b16 {v(mA+4*ks+2*q,2)}, {v(V_LMR)} offset:{ks*1536 + q*128}", f'm{ks}') for ks in range(10) for q in range(2)]
    for x in rd[:12]:
        L.op(*x)
    dm = kv_dma_list()
    if OPT.get('cut') is None:
        Lw3 = A.newlabel('w3st')
        A(f"s_cmp_lg_u32 {s(S_W)}, 3")
        A(f"s_cbranch_scc1 {Lw3}")
        kmvm_store(A)
        if OPT.get('merged'):
            Lp = A.newlabel('noprog')
            A(f"s_cmp_lt_u32 {s(S_STEP)}, 2")
            A(f"s_cbranch_scc1 {Lp}")
            A(f"s_sub_u32 {s(S_C2)}, {s(S_STEP)}, 1")
            progress(A, S_C2, RC + 16)
            A.label(Lp)
        if OPT.get('warm', 0):
            A(f"s_mov_b32 m0, {LDS_DUMMY + 2048}")
            A(f"s_add_u32 {s(S_A)}, {s(S_KO)}, {32*8192}")
            A(f"buffer_load_dword {v(V_WK)}, {s(S_WS,4)}, {s(S_A)} offen sc1 lds")
            A(f"s_add_u32 {s(S_A)}, {s(S_VO)}, {32*8192}")
            A(f"buffer_load_dword {v(V_WV)}, {s(S_WS,4)}, {s(S_A)} offen sc1 lds")
        A.label(Lw3)
    if OPT.get('cut') is None:
        for d in dm[:OPT.get('dma_head', 2)]:
            for x in d: A(x)
    issued = 12
    for ks in range(10):
        L.wait(f'm{ks}')
        A(f"v_smfmac_f32_16x16x64_bf16 {v(Dq0,4)}, {v(mA+4*ks,4)}, {wreg(0,ks)}, {v(V_IDX)}")
        if issued < 20:
            L.op(*rd[issued]); issued += 1
        A(f"v_smfmac_f32_16x16x64_bf16 {v(Dq1,4)}, {v(mA+4*ks,4)}, {wreg(1,ks)}, {v(V_IDX)}")
        if issued < 20:
            L.op(*rd[issued]); issued += 1
        if OPT.get('cut') is None and ks == 5:
            for d in dm[OPT.get('dma_head', 2):]:
                for x in d: A(x)
            kv_advance(A)
    if OPT.get('cut') == 1:
        return cut_tail(A, L, Ltop, exit_label)
    t = RC + 16
    def post(D0, D1, woff, tag):
        o = []
        for r in range(4):
            o.append((f"v_permlane32_swap_b32 {v(D0+r)}, {v(D1+r)}", None))
        for r in range(4):
            o.append((f"v_add_f32 {v(D0+r)}, {v(D0+r)}, {v(D1+r)}", None))
        o.append((f"v_cvt_pk_bf16_f32 {v(D0)}, {v(D0)}, {v(D0+1)}", None))
        o.append((f"v_cvt_pk_bf16_f32 {v(D0+1)}, {v(D0+2)}, {v(D0+3)}", None))
        o.append((f"ds_write_b64 {v(V_QW)}, {v(D0,2)} offset:{woff}", tag))
        return o
    def kx_reads(dst, off, tag):
        o = [(f"v_add_u32 {v(t)}, {s(S_KB)}, {v(V_KR)}", None)]
        for ks in range(4):
            if ks:
                o.append((f"v_xor_b32 {v(t)}, {(ks ^ (ks-1)) << 6}, {v(t)}", None))
            o.append((f"ds_read_b128 {v(dst+4*ks,4)}, {v(t)} offset:{off}", tag))
        return o
    def emit(x):
        if isinstance(x, tuple):
            if x[0].startswith('ds_'):
                L.op(x[0], x[1])
            else:
                A(x[0])
        else:
            A(x)
    km = []
    for ks in range(10):
        km.append(f"v_smfmac_f32_16x16x64_bf16 {v(Dk0,4)}, {v(mA+4*ks,4)}, {wreg(2,ks)}, {v(V_IDX)}")
        km.append(f"v_smfmac_f32_16x16x64_bf16 {v(Dk1,4)}, {v(mA+4*ks,4)}, {wreg(3,ks)}, {v(V_IDX)}")
    for x in interleave(km, kx_reads(Kx0, 0, 'kx0') + post(Dq0, Dq1, 0, 'qw'), per=1, start=0):
        emit(x)
    ts(A, 1, tson)
    if OPT.get('cut') == 2:
        return cut_tail(A, L, Ltop, exit_label)
    vm_ = [f"v_smfmac_f32_16x16x64_bf16 {v(Dv,4)}, {v(mA+4*ks,4)}, {wreg(4,ks)}, {v(V_IDX)}" for ks in range(10)]
    for x in vm_[:4]:
        emit(x)
    for x in interleave(vm_[4:], post(Dk0, Dk1, 2048, 'kw'), per=2):
        emit(x)
    for x in kx_reads(Kx1, 4096, 'kx1'):
        emit(x)
    L.wait('kw')
    A("s_barrier")
    ts(A, 2, tson)
    if OPT.get('cut') == 3:
        return cut_tail(A, L, Ltop, exit_label)
    fq, fk = RA, RA + 16
    Sm, Sx0, Sx1 = RA + 32, RA + 36, RB + 16
    Pv = RC + 16
    for ks in range(4):
        for q in range(2):
            L.op(f"ds_read_b64_tr_b16 {v(fq+4*ks+2*q,2)}, {v(V_QR)} offset:{ks*512 + q*64}", f'fq{ks}')
    A(f"v_cvt_pk_bf16_f32 {v(Pv)}, {v(Dv)}, {v(Dv+1)}")
    A(f"v_cvt_pk_bf16_f32 {v(Pv+1)}, {v(Dv+2)}, {v(Dv+3)}")
    L.op(f"ds_write_b64 {v(V_VMW)}, {v(Pv,2)}", 'vmw')
    fkr = [(f"ds_read_b64_tr_b16 {v(fk+4*ks+2*q,2)}, {v(V_QR)} offset:{2048 + ks*512 + q*64}", f'fk{ks}') for ks in range(4) for q in range(2)]
    for x in fkr[:2]:
        L.op(*x)
    for ks in range(4):
        L.wait(f'fq{ks}')
        A(f"v_mfma_f32_16x16x32_bf16 {v(Sx0,4)}, {v(Kx0+4*ks,4)}, {v(fq+4*ks,4)}, {'0' if ks == 0 else v(Sx0,4)}")
        A(f"v_mfma_f32_16x16x32_bf16 {v(Sx1,4)}, {v(Kx1+4*ks,4)}, {v(fq+4*ks,4)}, {'0' if ks == 0 else v(Sx1,4)}")
        if ks < 3:
            for x in fkr[2+2*ks:4+2*ks]:
                L.op(*x)
    for ks in range(4):
        L.wait(f'fk{ks}')
        A(f"v_mfma_f32_16x16x32_bf16 {v(Sm,4)}, {v(fk+4*ks,4)}, {v(fq+4*ks,4)}, {'0' if ks == 0 else v(Sm,4)}")
    if OPT.get('cut') == 4:
        return cut_tail(A, L, Ltop, exit_label)
    A("s_barrier")
    if OPT.get('cut') is None:
        A(f"s_cmp_eq_u32 {s(S_STEP)}, {nsteps-1}")
        A(f"s_cbranch_scc1 {Llast}")
    Vx, Vm = RA, RA + 16
    A(f"s_lshr_b32 {s(S_A)}, {s(S_KB)}, 1")
    A(f"v_add_u32 {v(t)}, {s(S_A)}, {v(V_VR)}")
    mx, tm = RC + 17, RC + 16
    A(f"v_max3_f32 {v(mx)}, {v(Sx0)}, {v(Sx0+1)}, {v(Sx0+2)}")
    for tt in range(4):
        if tt:
            A(f"v_xor_b32 {v(t)}, {(tt ^ (tt-1)) << 5}, {v(t)}")
        L.op(f"ds_read_b64_tr_b16 {v(Vx+4*tt,2)}, {v(t)}", f'vx{tt}')
        L.op(f"ds_read_b64_tr_b16 {v(Vx+4*tt+2,2)}, {v(t)} offset:2048", f'vx{tt}')
    A(f"v_max3_f32 {v(mx)}, {v(mx)}, {v(Sx0+3)}, {v(Sx1)}")
    A(f"v_max3_f32 {v(mx)}, {v(mx)}, {v(Sx1+1)}, {v(Sx1+2)}")
    A(f"v_max3_f32 {v(mx)}, {v(mx)}, {v(Sx1+3)}, {v(Sm)}")
    A(f"v_max3_f32 {v(mx)}, {v(mx)}, {v(Sm+1)}, {v(Sm+2)}")
    A(f"v_max_f32 {v(mx)}, {v(mx)}, {v(Sm+3)}")
    for tt in range(4):
        L.op(f"ds_read_b64 {v(Vm+2*tt,2)}, {v(V_VMR)} offset:{tt*512}", f'vm{tt}')
    A(f"v_mov_b32 {v(tm)}, {v(mx)}")
    WB = [RC, RC + 8, RA + 24]
    def wo_reads(tt, dst):
        L.op(f"ds_read_b128 {v(dst,4)}, {v(V_WOR)} offset:{tt*2048}", f'wo{tt}')
        L.op(f"ds_read_b128 {v(dst+4,4)}, {v(V_WOR)} offset:{tt*2048 + 1024}", f'wo{tt}')
    wo_reads(0, WB[0])
    A(f"v_permlane32_swap_b32 {v(mx)}, {v(tm)}")
    A(f"v_max_f32 {v(mx)}, {v(mx)}, {v(tm)}")
    A(f"v_mov_b32 {v(tm)}, {v(mx)}")
    wo_reads(1, WB[1])
    A(f"v_permlane16_swap_b32 {v(mx)}, {v(tm)}")
    A(f"v_max_f32 {v(mx)}, {v(mx)}, {v(tm)}")
    A(f"v_mul_f32 {v(mx)}, {s(S_NEGC)}, {v(mx)}")
    Px, Pm = RB, RB + 4
    def exps(S, P):
        for j in range(2):
            A(f"v_pk_fma_f32 {v(S+2*j,2)}, {v(S+2*j,2)}, {s(S_POSC,2)}, {v(tm,2)} op_sel:[0,0,1] op_sel_hi:[1,1,1]")
        for r in range(4):
            A(f"v_exp_f32 {v(S+r)}, {v(S+r)}")
        A(f"v_cvt_pk_bf16_f32 {v(P)}, {v(S)}, {v(S+1)}")
        A(f"v_cvt_pk_bf16_f32 {v(P+1)}, {v(S+2)}, {v(S+3)}")
    exps(Sx0, Px)
    exps(Sx1, Px + 2)
    ts(A, 3, tson)
    if OPT.get('cut') == 5:
        return cut_tail(A, L, Ltop, exit_label)
    oD = [RA + 32, RA + 36, RB + 16, RB + 6]
    den = RB + 10
    for j in range(2):
        A(f"v_pk_fma_f32 {v(Sm+2*j,2)}, {v(Sm+2*j,2)}, {s(S_POSC,2)}, {v(tm,2)} op_sel:[0,0,1] op_sel_hi:[1,1,1]")
    L.wait('vx1')
    A(f"v_mfma_f32_16x16x32_bf16 {v(oD[1],4)}, {v(Vx+4,4)}, {v(Px,4)}, 0")
    A(f"v_exp_f32 {v(Sm)}, {v(Sm)}")
    L.wait('vx2')
    A(f"v_mfma_f32_16x16x32_bf16 {v(oD[2],4)}, {v(Vx+8,4)}, {v(Px,4)}, 0")
    A(f"v_exp_f32 {v(Sm+1)}, {v(Sm+1)}")
    L.wait('vx3')
    A(f"v_mfma_f32_16x16x32_bf16 {v(oD[3],4)}, {v(Vx+12,4)}, {v(Px,4)}, 0")
    A(f"v_exp_f32 {v(Sm+2)}, {v(Sm+2)}")
    A(f"v_mfma_f32_16x16x32_bf16 {v(den,4)}, {v(V_ONE,4)}, {v(Px,4)}, 0")
    A(f"v_exp_f32 {v(Sm+3)}, {v(Sm+3)}")
    A(f"v_cvt_pk_bf16_f32 {v(Pm)}, {v(Sm)}, {v(Sm+1)}")
    A(f"v_cvt_pk_bf16_f32 {v(Pm+1)}, {v(Sm+2)}, {v(Sm+3)}")
    A(f"v_mfma_f32_16x16x32_bf16 {v(oD[0],4)}, {v(Vx,4)}, {v(Px,4)}, 0")
    L.wait('vm3')
    A(f"v_mfma_f32_16x16x16_bf16 {v(den,4)}, {v(V_HALF,2)}, {v(Pm,2)}, {v(den,4)}")
    for tt in (1, 2, 3, 0):
        A(f"v_mfma_f32_16x16x16_bf16 {v(oD[tt],4)}, {v(Vm+2*tt,2)}, {v(Pm,2)}, {v(oD[tt],4)}")
    wo_reads(2, WB[2])
    WB += [RA + 4, RA + 12]
    wo_reads(3, WB[3])
    ts(A, 4, tson)
    if OPT.get('cut') == 6:
        return cut_tail(A, L, Ltop, exit_label)
    A(f"v_rcp_f32 {v(tm)}, {v(den)}")
    Aop = [RB, RA]
    for tt in (1, 2, 3, 0):
        for j in range(2):
            A(f"v_pk_mul_f32 {v(oD[tt]+2*j,2)}, {v(oD[tt]+2*j,2)}, {v(tm,2)} op_sel_hi:[1,0]")
    for tt in range(4):
        dst = Aop[tt >> 1] + 2 * (tt & 1)
        A(f"v_cvt_pk_bf16_f32 {v(dst)}, {v(oD[tt])}, {v(oD[tt]+1)}")
        A(f"v_cvt_pk_bf16_f32 {v(dst+1)}, {v(oD[tt]+2)}, {v(oD[tt]+3)}")
    wo_reads(4, WB[4])
    ts(A, 5, tson)
    if OPT.get('cut') == 7:
        return cut_tail(A, L, Ltop, exit_label)
    DW = [RA + 32, RA + 36, RB + 16, RB + 6, RB + 10, RA + 20]
    def wo_post(T0):
        d0, d1 = DW[T0 % 6], DW[(T0 + 1) % 6]
        return [f"v_cvt_pk_bf16_f32 {v(d0)}, {v(d0)}, {v(d0+1)}",
                f"v_cvt_pk_bf16_f32 {v(d0+1)}, {v(d0+2)}, {v(d0+3)}",
                f"v_cvt_pk_bf16_f32 {v(d0+2)}, {v(d1)}, {v(d1+1)}",
                f"v_cvt_pk_bf16_f32 {v(d0+3)}, {v(d1+2)}, {v(d1+3)}",
                f"s_add_u32 {s(S_A)}, {s(S_RSL)}, {(T0//2)*16384}",
                f"v_permlane16_swap_b32 {v(d0)}, {v(d0+2)}",
                f"v_permlane16_swap_b32 {v(d0+1)}, {v(d0+3)}",
                f"buffer_store_dwordx4 {v(d0,4)}, {v(V_RSS)}, {s(S_WS,4)}, {s(S_A)} offen{sc}"] if not OPT.get('nost') else ["s_nop 0"]
    pend = []
    for tt in range(10):
        L.wait(f'wo{tt}')
        b = WB[tt % 5]; d = DW[tt % 6]
        A(f"v_mfma_f32_16x16x32_bf16 {v(d,4)}, {v(Aop[0],4)}, {v(b,4)}, 0")
        for _ in range(2):
            if pend: A(pend.pop(0))
        A(f"v_mfma_f32_16x16x32_bf16 {v(d,4)}, {v(Aop[1],4)}, {v(b+4,4)}, {v(d,4)}")
        if tt + 5 < 10:
            wo_reads(tt + 5, b)
        for _ in range(2):
            if pend: A(pend.pop(0))
        if tt >= 2 and tt % 2 == 0:
            pend += wo_post(tt - 2)
    for x in pend:
        A(x)
    for x in wo_post(8):
        A(x)
    ts(A, 6, tson)
    if OPT.get('cut') == 8:
        return cut_tail(A, L, Ltop, exit_label)
    nrs, nex, nag = OPT.get('nrs', 2), OPT.get('nex', 2), OPT.get('nag', 2)
    XS = [RA, RA + 16]; D, U = RA + 32, RA + 36
    NEG = RB; YS = [RA, RA + 4, RA + 8, RA + 12]
    Lnr = A.newlabel('nored'); Lj = A.newlabel('join')
    A(f"s_cmp_eq_u32 {s(S_ISRED)}, 0")
    A(f"s_cbranch_scc1 {Lnr}")
    def rs_loads(i):
        return [f"buffer_load_dwordx4 {v(XS[i]+4*j,4)}, {v(V_RSL0)}, {s(S_WS,4)}, {s(S_RSL)} offen offset:{j*1024} sc1" for j in range(4)]
    def fill_rs():
        for r in range(4):
            A(f"v_mov_b32 {v(NEG+r)}, -1")
        A(f"s_lshr_b32 {s(S_TAG)}, {s(S_STEP)}, 1")
        A(f"s_and_b32 {s(S_TAG)}, {s(S_TAG)}, 1")
    def rs_done(i):
        for j in range(4):
            A(f"v_mfma_f32_16x16x32_bf16 {v(D,4)}, {v(V_SELR,4)}, {v(XS[i]+4*j,4)}, {'0' if j == 0 else v(D,4)}")
    ppoll(A, nrs, rs_loads, lambda i: sentinel_check(A, list(range(XS[i], XS[i] + 16))), rs_done,
          pre=OPT.get('pre_rs', 0), gap=OPT.get('gap_rs', 2), fill=fill_rs)
    ts(A, 7, tson)
    for r in range(4):
        A(f"v_add_f32_dpp {v(U+r)}, {v(D+r)}, {v(D+r)} row_ror:8 row_mask:0xf bank_mask:0xf")
    A(f"v_and_or_b32 {v(U)}, {v(U)}, -2, {s(S_TAG)}")
    A(f"buffer_store_dwordx4 {v(U,4)}, {v(V_PGP)}, {s(S_WS,4)}, {s(S_PGP)} offen sc1")
    if tson:
        A(f"s_sub_u32 {s(S_TSV+13)}, 0x80000, {s(S_SPIN)}")
    ts(A, 10, tson)
    for j in range(4):
        A(f"buffer_store_dwordx4 {v(NEG,4)}, {v(V_RSL0)}, {s(S_WS,4)}, {s(S_RSL)} offen offset:{j*1024}{sc}")
    A(f"buffer_store_dwordx4 {v(NEG,4)}, {v(V_AGS)}, {s(S_WS,4)}, {s(S_AGR)} offen{sc}")
    A("s_mov_b64 exec, 0x00ff00ff")
    def ex_check(i):
        A(f"v_and_b32 {v(RC+17)}, 1, {v(YS[i])}")
        A(f"v_cmp_ne_u32 vcc, {s(S_TAG)}, {v(RC+17)}")
    def ex_done(i):
        for j in range(2):
            A(f"v_pk_add_f32 {v(U+2*j,2)}, {v(U+2*j,2)}, {v(YS[i]+2*j,2)}")
    ppoll(A, nex, lambda i: [f"buffer_load_dwordx4 {v(YS[i],4)}, {v(V_PGP)}, {s(S_WS,4)}, {s(S_AGO)} offen sc1"], ex_check, ex_done,
          pre=OPT.get('pre_ex', 0), gap=OPT.get('gap_ex', 4))
    A("s_mov_b64 exec, -1")
    if tson:
        A(f"s_sub_u32 {s(S_TSV+14)}, 0x80000, {s(S_SPIN)}")
    ts(A, 8, tson)
    A(f"v_cvt_pk_bf16_f32 {v(U)}, {v(U)}, {v(U+1)}")
    A(f"v_cvt_pk_bf16_f32 {v(U+1)}, {v(U+2)}, {v(U+3)}")
    A(f"v_mov_b32 {v(U+2)}, {v(U)}")
    A(f"v_mov_b32 {v(U+3)}, {v(U+1)}")
    A(f"v_permlane16_swap_b32 {v(U)}, {v(U+2)}")
    A(f"v_permlane16_swap_b32 {v(U+1)}, {v(U+3)}")
    A(f"buffer_store_dwordx4 {v(U,4)}, {v(V_AGS)}, {s(S_WS,4)}, {s(S_AGS)} offen{sc}")
    A(f"s_branch {Lj}")
    A.label(Lnr)
    L.ops = []
    A(f"s_cmp_lg_u32 {s(S_W)}, 3")
    A(f"s_cbranch_scc1 {Lj}")
    for _ in range(OPT.get('pre_side', 0)):
        A("s_nop 15")
    if not OPT.get('noside'):
        tail_side_work(A, L)
    A.label(Lj)
    if OPT.get('rt'):
        Lr = A.newlabel('rt')
        A(f"s_or_b32 s85, {s(S_X)}, {s(S_C)}"); A(f"s_cmp_lg_u32 s85, 0"); A(f"s_cbranch_scc1 {Lr}")
        A(f"s_cmp_lg_u32 {s(S_W)}, 3"); A(f"s_cbranch_scc1 {Lr}")
        A(f"s_lshl_b32 s85, {s(S_STEP)}, 2")
        rt_stamp(A, 85, True, RA + 30)
        A.label(Lr)
    ts(A, 11, tson)
    A("s_barrier")
    ts(A, 12, tson)
    AS = [RA, RA + 12, RA + 24]
    def ag_loads(i):
        X = AS[i]
        return [f"buffer_load_dwordx4 {v(X,4)}, {v(V_AG)}, {s(S_WS,4)}, {s(S_AGS)} offen sc1",
                f"buffer_load_dwordx4 {v(X+4,4)}, {v(V_AG)}, {s(S_WS,4)}, {s(S_AGS)} offen offset:1024 sc1",
                f"buffer_load_dwordx4 {v(X+8,4)}, {v(V_AG2)}, {s(S_WS,4)}, {s(S_AGS)} offen offset:2048 sc1"]
    def fill_ag():
        for d in range(20):
            A(f"v_mov_b32 {v(RB+d)}, 0")
        A(f"s_add_u32 {s(S_STEP)}, {s(S_STEP)}, 1")
        A(f"s_xor_b32 {s(S_PGP)}, {s(S_PGP)}, {PG_SLOT}")
        A(f"s_xor_b32 {s(S_AGO)}, {s(S_AGO)}, {PG_SLOT}")
        A(f"s_xor_b32 {s(S_KB)}, {s(S_KB)}, 8192")
        A(f"s_xor_b32 {s(S_RSL)}, {s(S_RSL)}, {RS_SLOT}")
        A(f"s_xor_b32 {s(S_AGR)}, {s(S_AGR)}, {AG_SLOT}")
    def ag_done(i):
        X = AS[i]
        A(f"ds_write_b128 {v(V_LMW)}, {v(X,4)}")
        A(f"ds_write_b128 {v(V_LMW)}, {v(X+4,4)} offset:1536")
        A(f"ds_write_b128 {v(V_LMW2)}, {v(X+8,4)} offset:3072")
    ppoll(A, nag, ag_loads, lambda i: sentinel_check(A, list(range(AS[i], AS[i] + 12))), ag_done,
          pre=OPT.get('pre_ag', 0), gap=OPT.get('gap_ag', 0), fill=fill_ag)
    if tson:
        A(f"s_sub_u32 {s(S_TSV+15)}, 0x80000, {s(S_SPIN)}")
    A(f"s_xor_b32 {s(S_AGS)}, {s(S_AGS)}, {AG_SLOT}")
    A("s_waitcnt vmcnt(0)")
    L.drain()
    ts(A, 9, tson)
    ts_flush(A, tson, RA + 32)
    A("s_barrier")
    A(f"s_branch {Ltop}")
    A.label(Llast)
    L.ops = []
    Lend = A.newlabel('endw')
    A(f"s_cmp_lg_u32 {s(S_W)}, 3")
    A(f"s_cbranch_scc1 {Lend}")
    kmvm_prepare(A, L)
    kmvm_store(A)
    A("s_waitcnt vmcnt(0)")
    if OPT.get('merged'):
        A(f"s_mov_b32 {s(S_C2)}, 64")
        progress(A, S_C2, RB + 4)
        A("s_waitcnt vmcnt(0)")
    A.label(Lend)
    A(f"s_branch {exit_label}")

def gen_chain(A, tson, exit_label):
    import struct
    gen_prologue(A, tson)
    cb = struct.unpack('<I', struct.pack('<f', SCALE_LOG2E))[0]
    nb = struct.unpack('<I', struct.pack('<f', -SCALE_LOG2E))[0]
    A(f"s_mov_b32 {s(S_POSC)}, {cb:#x}")
    A(f"s_mov_b32 {s(S_POSC+1)}, {cb:#x}")
    A(f"s_mov_b32 {s(S_NEGC)}, {nb:#x}")
    A(f"s_mov_b32 {s(S_KMO)}, {INVALID:#x}")
    for d in range(20):
        A(f"v_mov_b32 {v(RB+d)}, 0")
    Lslow = A.newlabel('slow')
    A(f"s_cmp_eq_u32 {s(S_FAST)}, 0")
    A(f"s_cbranch_scc1 {Lslow}")
    gen_loop(A, tson, True, exit_label, OPT.get('nsteps', 64))
    A.label(Lslow)
    gen_loop(A, tson, False, exit_label, OPT.get('nsteps', 64))
```

```python
from asm import *
from layout import *
from gemm import Gemm, Op, stamp, stamp_flush, PROF
import struct

def f32bits(x):
    return struct.unpack('<I', struct.pack('<f', x))[0]

def begin(A, name, nwg):
    A.raw(f".globl {name}\n.p2align 8\n.type {name},@function")
    A.label(name)
    A(f"s_cmp_ge_u32 s2, {nwg}")
    A(f"s_cbranch_scc1 {name}_xtra")
    stamp(A, 0)
    if KRT['on']:
        A("s_memrealtime s[96:97]"); A("s_waitcnt lgkmcnt(0)"); A("s_mov_b32 s98, s96")

KRT = {'on': False, 'n': 0}
def end(A, name):
    if PROF['on']:
        A("s_waitcnt vmcnt(0)"); stamp(A, 4); stamp_flush(A)
    A.label(f"{name}_exit")
    if KRT['on']:
        slot = KRT['n']; KRT['n'] += 1
        A("s_load_dwordx2 s[92:93], s[0:1], 128"); A("s_memrealtime s[96:97]"); A("s_waitcnt lgkmcnt(0)")
        A("s_and_b32 s93, s93, 0xffff"); A("s_mov_b32 s94, 0x10000000"); A(f"s_mov_b32 s95, {SRD3:#x}")
        A(f"s_lshl_b32 s99, s2, 3"); A(f"s_add_u32 s99, s99, {WS_TS + 0x10000 + slot*0x2000}")
        A("v_mov_b32 v0, s98"); A("v_mov_b32 v1, s96"); A("v_mov_b32 v2, 0")
        A("buffer_store_dwordx2 v[0:1], v2, s[92:95], s99 offen"); A("s_waitcnt vmcnt(0)")
    A.label(f"{name}_xtra")
    A("s_endpgm")

def descriptor(name, vgpr=256, acc=256, sgpr=102):
    return f""".amdhsa_kernel {name}
  .amdhsa_next_free_vgpr {vgpr}
  .amdhsa_next_free_sgpr {sgpr}
  .amdhsa_accum_offset {acc}
  .amdhsa_group_segment_fixed_size 0
  .amdhsa_kernarg_size 136
  .amdhsa_user_sgpr_count 2
  .amdhsa_user_sgpr_kernarg_segment_ptr 1
  .amdhsa_system_sgpr_workgroup_id_x 1
  .amdhsa_float_denorm_mode_32 3
.end_amdhsa_kernel"""

def srd_fin(A, dst, nbytes):
    A(f"s_and_b32 {s(dst+1)}, {s(dst+1)}, 0xffff")
    A(f"s_mov_b32 {s(dst+2)}, {nbytes}")
    A(f"s_mov_b32 {s(dst+3)}, {SRD3:#x}")

def load_srd(A, dst, key):
    A(f"s_load_dwordx2 {s(dst,2)}, s[0:1], {KA[key]}")

def k_qkv(A, name="qkv_kernel"):
    begin(A, name, 768)
    S_WS, S_W = 4, 8
    load_srd(A, S_WS, 'ws')
    A("s_and_b32 s12, s2, 7"); A("s_lshr_b32 s13, s2, 3")
    A("s_mul_i32 s12, s12, 6"); A("s_lshr_b32 s14, s13, 4"); A("s_add_u32 s12, s12, s14")
    A("s_and_b32 s13, s13, 15")
    A("s_lshr_b32 s14, s12, 4")
    A("s_lshl_b32 s15, s14, 3"); A(f"s_add_u32 s15, s15, {KA['Wq']}")
    A(f"s_load_dwordx2 {s(S_W,2)}, s[0:1], s15")
    A("s_and_b32 s12, s12, 15")
    G = Gemm(A, Op('kc', 128, 1280, S_WS), Op('km', 256, 8192, S_W), 10, vb=2, sb=40)
    G.lanes(0)
    A("s_waitcnt lgkmcnt(0)")
    srd_fin(A, S_WS, WS_BYTES); srd_fin(A, S_W, 640*4096*2)
    G.setup()
    A(f"s_mul_i32 {s(G.s_mo)}, s13, {128*1280}"); A(f"s_add_u32 {s(G.s_mo)}, {s(G.s_mo)}, {WS_H}")
    A(f"s_lshl_b32 {s(G.s_no)}, s12, 9")
    A(f"s_lshl_b32 s16, s14, 24"); A(f"s_add_u32 s16, s16, {WS_Q}")
    A(f"s_mul_i32 s17, s13, {128*8192}"); A("s_add_u32 s16, s16, s17")
    A("s_lshl_b32 s17, s12, 9"); A("s_add_u32 s16, s16, s17")
    G.run()
    G.epilogue(lambda tn, tm, d: None, None, S_WS, 8192, 16)
    A("s_waitcnt vmcnt(0)")
    end(A, name)
    return name, (768, 256, 3 * G.stage), descriptor(name)

def assemble(kernels, header=()):
    A = Asm()
    body = Asm()
    infos = [k(body) for k in kernels]
    out = list(header)
    for name, (g, b, lds), _ in infos:
        out.append(f"; @launch kernel={name} grid=({g},1,1) block=({b},1,1) lds={lds}")
    out.append('.amdgcn_target "amdgcn-amd-amdhsa--gfx950"')
    out.append('.text')
    txt, pads = body.finish()
    desc = '.section .rodata,"a"\n' + '\n'.join('.p2align 6\n' + d for _, _, d in {i[0]: i for i in infos}.values())
    return '\n'.join(out) + '\n' + txt + desc + '\n', pads

def rbf(A, dst, src, tmp=None):
    A(f"v_cvt_pk_bf16_f32 {v(dst)}, {v(src)}, {v(src)}")
    A(f"v_and_b32 {v(dst)}, 0xffff0000, {v(dst)}")

def wave_sum(A, x, t):
    for r in (1, 2, 4, 8):
        A(f"v_add_f32_dpp {v(x)}, {v(x)}, {v(x)} row_ror:{r} row_mask:0xf bank_mask:0xf")
    for sw in ('16', '32'):
        A(f"v_mov_b32 {v(t)}, {v(x)}")
        A(f"v_permlane{sw}_swap_b32 {v(x)}, {v(t)}")
        A(f"v_add_f32 {v(x)}, {v(x)}, {v(t)}")

LOG2E = 1.4426950408889634

def body_mod(A, s_col, srd_ready=False):
    S_WS, S_C, S_WM = 4, 8, 12
    if not srd_ready: load_srd(A, S_WS, 'ws')
    load_srd(A, S_C, 'c'); load_srd(A, S_WM, 'wmod')
    A("v_and_b32 v1, 63, v0"); A("v_lshrrev_b32 v2, 6, v0")
    A("v_lshrrev_b32 v3, 3, v1"); A("v_lshl_add_u32 v3, v2, 3, v3")
    A("v_and_b32 v4, 7, v1")
    A("s_waitcnt lgkmcnt(0)")
    if not srd_ready: srd_fin(A, S_WS, WS_BYTES)
    srd_fin(A, S_C, 1280); srd_fin(A, S_WM, 640*3840*2)
    A("s_movk_i32 s16, 7680")
    A("v_mul_lo_u32 v5, v3, s16"); A("v_lshl_add_u32 v5, v4, 4, v5")
    A(f"s_lshl_b32 s17, {s(s_col)}, 7")
    A("v_lshlrev_b32 v6, 1, v3")
    for i in range(20):
        A(f"buffer_load_ushort v{100+i}, v6, {s(S_C,4)}, 0 offen offset:{i*64}")
    for i in range(20):
        A(f"buffer_load_dwordx4 {v(20+4*i,4)}, v5, {s(S_WM,4)}, s17 offen")
        A(f"s_add_u32 s17, s17, {32*7680}")
    for r in range(8):
        A(f"v_mov_b32 v{10+r}, 0")
    A("s_waitcnt vmcnt(20)")
    for i in range(20):
        c = 100 + i
        A(f"v_lshlrev_b32 v{c}, 16, v{c}")
        A(f"v_mul_f32 v7, {f32bits(-LOG2E):#x}, v{c}")
        A("v_exp_f32 v7, v7"); A("v_add_f32 v7, 1.0, v7"); A("v_rcp_f32 v7, v7")
        A(f"v_mul_f32 v{c}, v{c}, v7")
        rbf(A, c, c)
    for i in range(20):
        A(f"s_waitcnt vmcnt({19-i})")
        for d in range(4):
            A(f"v_lshlrev_b32 v8, 16, v{20+4*i+d}")
            A(f"v_and_b32 v9, 0xffff0000, v{20+4*i+d}")
            A(f"v_fmac_f32 v{10+2*d}, v8, v{100+i}")
            A(f"v_fmac_f32 v{11+2*d}, v9, v{100+i}")
    import chain as _c
    if _c.OPT.get('rt'):
        A("s_memrealtime s[94:95]"); A("s_waitcnt lgkmcnt(0)")
    for r in range(8):
        A(f"v_add_f32_dpp v{10+r}, v{10+r}, v{10+r} row_ror:8 row_mask:0xf bank_mask:0xf")
    for sw in ('16', '32'):
        for r in range(8):
            A(f"v_mov_b32 v{20+r}, v{10+r}")
        for r in range(8):
            A(f"v_permlane{sw}_swap_b32 v{10+r}, v{20+r}")
        for r in range(8):
            A(f"v_add_f32 v{10+r}, v{10+r}, v{20+r}")
    A("v_lshlrev_b32 v8, 5, v4"); A("v_lshl_add_u32 v8, v2, 8, v8")
    A("s_mov_b64 exec, 0xff")
    A("ds_write_b128 v8, v[10:13]"); A("ds_write_b128 v8, v[14:17] offset:16")
    A("s_mov_b64 exec, -1")
    A("s_waitcnt lgkmcnt(0)"); A("s_barrier")
    L = A.newlabel('modw')
    A("v_readfirstlane_b32 s18, v2"); A("s_cmp_lg_u32 s18, 0"); A(f"s_cbranch_scc1 {L}")
    A("v_lshlrev_b32 v8, 2, v1")
    for w in range(4):
        A(f"ds_read_b32 v{10+w}, v8 offset:{w*256}")
    A("s_waitcnt lgkmcnt(0)")
    A("v_add_f32 v10, v10, v11"); A("v_add_f32 v12, v12, v13"); A("v_add_f32 v10, v10, v12")
    rbf(A, 10, 10)
    A(f"s_cmp_ge_u32 {s(s_col)}, 10"); A("s_cselect_b32 s18, 1, 0")
    A(f"s_cmp_lt_u32 {s(s_col)}, 20"); A("s_cselect_b32 s18, s18, 0")
    A(f"s_cmp_ge_u32 {s(s_col)}, 40"); A("s_cselect_b32 s19, 1, 0")
    A(f"s_cmp_lt_u32 {s(s_col)}, 50"); A("s_cselect_b32 s19, s19, 0")
    A("s_or_b32 s18, s18, s19")
    L2 = A.newlabel('mod1')
    A("s_cmp_eq_u32 s18, 0"); A(f"s_cbranch_scc1 {L2}")
    A("v_add_f32 v10, 1.0, v10"); rbf(A, 10, 10)
    A.label(L2)
    A(f"s_lshl_b32 s17, {s(s_col)}, 8"); A(f"s_add_u32 s17, s17, {WS_MOD}")
    A(f"buffer_store_dword v10, v8, {s(S_WS,4)}, s17 offen sc1")
    A("s_waitcnt vmcnt(0)")
    A.label(L)

def k_mod(A, name="mod_kernel"):
    begin(A, name, 60)
    A("s_mov_b32 s20, s2")
    body_mod(A, 20)
    end(A, name)
    return name, (60, 256, 1024), descriptor(name, 128, 128)

def body_ln(A, src_srd, src_off, dst_off, shift_row, scale_row, s_row, nrows, flags='', wait=None, mfl=''):
    X = 10; T = 30; MS = 40; MC = 50
    A("v_lshlrev_b32 v2, 2, v1")
    A("v_lshlrev_b32 v3, 3, v1")
    def row_loads(r):
        A(f"s_add_u32 s24, {s(s_row)}, {r}")
        A("s_mul_i32 s24, s24, 1280")
        A(f"s_add_u32 s25, s24, {src_off}")
        for j in range(5):
            A(f"buffer_load_dword v{X+5+j}, v2, {s(src_srd,4)}, s25 offen offset:{j*256}")
    row_loads(0)
    if wait: wait()
    for j in range(5):
        A(f"buffer_load_dwordx2 {v(MS+2*j,2)}, v3, s[4:7], s21 offen offset:{j*512}{mfl}")
        A(f"buffer_load_dwordx2 {v(MC+2*j,2)}, v3, s[4:7], s22 offen offset:{j*512}{mfl}")
    for r in range(nrows):
        if r: row_loads(r)
        A("s_waitcnt vmcnt(0)")
        for j in range(5):
            A(f"v_lshlrev_b32 v{T+2*j}, 16, v{X+5+j}")
            A(f"v_and_b32 v{T+2*j+1}, 0xffff0000, v{X+5+j}")
        ln_core(A, T, MS, MC)
        A(f"s_add_u32 s25, s24, {dst_off}")
        for j in range(5):
            A(f"v_cvt_pk_bf16_f32 v{X+j}, v{T+2*j}, v{T+2*j+1}")
            A(f"buffer_store_dword v{X+j}, v2, s[4:7], s25 offen offset:{j*256}{flags}")

def body_fin(A, s_row, nrows, xsrd, wait=None):
    GA, MS, MC = 60, 40, 50
    P = 70
    XR = 15; T = 30
    A("v_lshlrev_b32 v2, 2, v1"); A("v_lshlrev_b32 v3, 3, v1")
    A(f"s_mov_b32 s21, {WS_MOD + 3*2560}"); A(f"s_mov_b32 s22, {WS_MOD + 4*2560}"); A(f"s_mov_b32 s23, {WS_MOD + 2*2560}")
    for j in range(5):
        A(f"buffer_load_dwordx2 {v(MS+2*j,2)}, v3, s[4:7], s21 offen offset:{j*512} sc1")
        A(f"buffer_load_dwordx2 {v(MC+2*j,2)}, v3, s[4:7], s22 offen offset:{j*512} sc1")
        A(f"buffer_load_dwordx2 {v(GA+2*j,2)}, v3, s[4:7], s23 offen offset:{j*512} sc1")
    def loads(r, pb, xb):
        A(f"s_add_u32 s24, {s(s_row)}, {r}")
        A("s_mul_i32 s25, s24, 2560"); A(f"s_add_u32 s25, s25, {WS_WP}")
        for sp in range(4):
            for j in range(5):
                A(f"buffer_load_dwordx2 {v(pb+10*sp+2*j,2)}, v3, s[4:7], s25 offen offset:{j*512} sc1")
            A(f"s_add_u32 s25, s25, {2048*2560}")
        A("s_mul_i32 s25, s24, 1280")
        for j in range(5):
            A(f"buffer_load_dword v{xb+j}, v2, {s(xsrd,4)}, s25 offen offset:{j*256}")
    PB = [P, P + 40]; XB = [XR, XR + 5]
    if wait: wait()
    loads(0, PB[0], XB[0])
    for r in range(nrows):
        pb, xb = PB[r & 1], XB[r & 1]
        if r + 1 < nrows:
            loads(r + 1, PB[(r+1) & 1], XB[(r+1) & 1])
            A("s_waitcnt vmcnt(25)")
        else:
            A("s_waitcnt vmcnt(0)")
        for j in range(10):
            x = T + j
            A(f"v_add_f32 v{x}, v{pb+j}, v{pb+10+j}"); A(f"v_add_f32 v5, v{pb+20+j}, v{pb+30+j}"); A(f"v_add_f32 v{x}, v{x}, v5")
            rbf(A, x, x)
            A(f"v_mul_f32 v{x}, v{x}, v{GA+j}"); rbf(A, x, x)
            if j & 1: A(f"v_and_b32 v5, 0xffff0000, v{xb+j//2}")
            else: A(f"v_lshlrev_b32 v5, 16, v{xb+j//2}")
            A(f"v_add_f32 v{x}, v{x}, v5")
        A(f"s_add_u32 s24, {s(s_row)}, {r}"); A("s_mul_i32 s24, s24, 1280")
        A(f"s_add_u32 s25, s24, {WS_X1}")
        for j in range(5):
            A(f"v_cvt_pk_bf16_f32 v{10+j}, v{T+2*j}, v{T+2*j+1}")
            A(f"buffer_store_dword v{10+j}, v2, s[4:7], s25 offen offset:{j*256}")
            A(f"v_lshlrev_b32 v{T+2*j}, 16, v{10+j}"); A(f"v_and_b32 v{T+2*j+1}, 0xffff0000, v{10+j}")
        ln_core(A, T, MS, MC)
        A(f"s_add_u32 s25, s24, {WS_H2}")
        for j in range(5):
            A(f"v_cvt_pk_bf16_f32 v{25+j}, v{T+2*j}, v{T+2*j+1}")
            A(f"buffer_store_dword v{25+j}, v2, s[4:7], s25 offen offset:{j*256} sc1")

def ln_core(A, T, MS, MC):
    A(f"v_add_f32 v4, v{T}, v{T+1}")
    for j in range(2, 10):
        A(f"v_add_f32 v4, v4, v{T+j}")
    wave_sum(A, 4, 5)
    A(f"v_mul_f32 v4, {f32bits(1/640):#x}, v4")
    A("v_mov_b32 v6, 0")
    for j in range(10):
        A(f"v_sub_f32 v5, v{T+j}, v4")
        A("v_fmac_f32 v6, v5, v5")
    wave_sum(A, 6, 5)
    A(f"v_mul_f32 v6, {f32bits(1/640):#x}, v6")
    rbf(A, 6, 6)
    A(f"v_add_f32 v6, {f32bits(1e-5):#x}, v6"); rbf(A, 6, 6)
    A("v_sqrt_f32 v6, v6"); A("s_nop 0"); rbf(A, 6, 6)
    A("v_rcp_f32 v7, v6")
    rbf(A, 4, 4)
    for j in range(10):
        x = T + j
        A(f"v_sub_f32 v{x}, v{x}, v4"); rbf(A, x, x)
        A(f"v_mul_f32 v5, v{x}, v7")
        A(f"v_fma_f32 v8, -v5, v6, v{x}")
        A(f"v_fma_f32 v{x}, v8, v7, v5"); rbf(A, x, x)
        A(f"v_mul_f32 v{x}, v{x}, v{MC+j}"); rbf(A, x, x)
        A(f"v_add_f32 v{x}, v{x}, v{MS+j}")

def k_ln(first):
    def gen(A):
        name = "ln1_kernel" if first else "ln2_kernel"
        begin(A, name, 512)
        load_srd(A, 4, 'ws')
        if first: load_srd(A, 8, 'x')
        A("v_and_b32 v1, 63, v0"); A("v_lshrrev_b32 v2, 6, v0"); A("v_readfirstlane_b32 s20, v2")
        A("s_lshl_b32 s23, s2, 2"); A("s_add_u32 s20, s20, s23")
        A(f"s_mov_b32 s21, {WS_MOD + (0 if first else 3*2560)}")
        A(f"s_mov_b32 s22, {WS_MOD + (2560 if first else 4*2560)}")
        A("s_waitcnt lgkmcnt(0)")
        srd_fin(A, 4, WS_BYTES)
        if first: srd_fin(A, 8, 2048*1280)
        body_ln(A, 8 if first else 4, 0 if first else WS_X1, WS_H if first else WS_H2, 0, 0, 20, 1)
        A("s_waitcnt vmcnt(0)")
        end(A, name)
        return name, (512, 256, 0), descriptor(name, 64, 64)
    return gen
k_ln1 = k_ln(True); k_ln2 = k_ln(False)

def unpack_add_pack(A, dst, other, t):
    for d in range(4):
        A(f"v_lshlrev_b32 {v(t)}, 16, {v(dst+d)}")
        A(f"v_lshlrev_b32 {v(t+1)}, 16, {v(other+d)}")
        A(f"v_and_b32 {v(t+2)}, 0xffff0000, {v(dst+d)}")
        A(f"v_and_b32 {v(t+3)}, 0xffff0000, {v(other+d)}")
        A(f"v_add_f32 {v(t)}, {v(t)}, {v(t+1)}")
        A(f"v_add_f32 {v(t+2)}, {v(t+2)}, {v(t+3)}")
        A(f"v_cvt_pk_bf16_f32 {v(dst+d)}, {v(t)}, {v(t+2)}")

class Resid:
    def __init__(self, A, G, gate_off, res_srd, s_res, out_srd, out_ld, s_out, s_ncol, bias_m=None, flags=''):
        self.__dict__.update(locals())
        self.base = (G.vend + 2) & ~1
        self.gate = self.base; self.bm = self.gate + G.TN * 4; self.res = (self.bm + G.TM + 1) & ~1
    def prefetch(self):
        A, G = self.A, self.G; t = G.tmp; n, g = G.ln, G.lg
        A(f"s_mul_i32 {s(G.s_t0)}, {s(G.s_wn)}, {G.TN*16}")
        A(f"s_add_u32 {s(G.s_t0)}, {s(G.s_t0)}, {s(self.s_ncol)}")
        A(f"s_lshl_b32 {s(G.s_t0)}, {s(G.s_t0)}, 2")
        A(f"s_add_u32 {s(G.s_t0)}, {s(G.s_t0)}, {self.gate_off}")
        A(f"v_lshlrev_b32 {v(t+8)}, 4, {v(g)}")
        for tn in range(G.TN):
            A(f"buffer_load_dwordx4 {v(self.gate+4*tn,4)}, {v(t+8)}, s[4:7], {s(G.s_t0)} offen offset:{tn*64}")
        if self.bias_m:
            bsrd, s_mrow = self.bias_m
            A(f"s_mul_i32 {s(G.s_t0)}, {s(G.s_wm)}, {G.TM*16}")
            A(f"s_add_u32 {s(G.s_t0)}, {s(G.s_t0)}, {s(s_mrow)}")
            A(f"s_lshl_b32 {s(G.s_t0)}, {s(G.s_t0)}, 1")
            A(f"v_lshlrev_b32 {v(t+9)}, 1, {v(n)}")
            for tm in range(G.TM):
                A(f"buffer_load_ushort {v(self.bm+tm)}, {v(t+9)}, {s(bsrd,4)}, {s(G.s_t0)} offen offset:{tm*32}")
        gq, rpi, nrd = G.row_geometry(self.out_ld, self.s_res)
        self.nrd = nrd
        for i in range(nrd):
            A(f"buffer_load_dwordx4 {v(self.res+4*i,4)}, {v(gq)}, {s(self.res_srd,4)}, {s(G.s_t0)} offen")
            A(f"s_add_u32 {s(G.s_t0)}, {s(G.s_t0)}, {rpi*self.out_ld}")
        self.nloads = G.TN + (G.TM if self.bias_m else 0) + nrd
    def finish(self):
        A, G = self.A, self.G
        if self.bias_m:
            for tm in range(G.TM):
                A(f"v_lshlrev_b32 {v(self.bm+tm)}, 16, {v(self.bm+tm)}")
        def value(tn, tm, d):
            for r in range(4):
                if self.bias_m:
                    A(f"v_add_f32 {v(d+r)}, {v(d+r)}, {v(self.bm+tm)}")
                A(f"v_mul_f32 {v(d+r)}, {v(d+r)}, {v(self.gate+4*tn+r)}")
        tq = self.res + 4 * self.nrd
        def rowop(i, reg, voff, soff, rpi):
            unpack_add_pack(A, reg, self.res + 4*i, tq)
        G.epilogue(value, rowop, self.out_srd, self.out_ld, self.s_out, self.flags)

def k_wo(A, name="wo_kernel"):
    begin(A, name, 160)
    load_srd(A, 4, 'ws'); load_srd(A, 8, 'Wo'); load_srd(A, 12, 'x')
    A("s_and_b32 s17, s2, 15"); A("s_lshr_b32 s16, s2, 4")
    G = Gemm(A, Op('kc', 128, 8192, 4), Op('km', 64, 1280, 8), 64, vb=2, sb=40)
    G.lanes(0)
    A("s_waitcnt lgkmcnt(0)")
    srd_fin(A, 4, WS_BYTES); srd_fin(A, 8, 4096*1280); srd_fin(A, 12, 2048*1280)
    G.setup()
    A(f"s_mul_i32 {s(G.s_mo)}, s17, {128*8192}"); A(f"s_add_u32 {s(G.s_mo)}, {s(G.s_mo)}, {WS_O}")
    A(f"s_lshl_b32 {s(G.s_no)}, s16, 7")
    A(f"s_mul_i32 s18, s17, {128*1280}"); A("s_lshl_b32 s19, s16, 7"); A("s_add_u32 s18, s18, s19")
    A(f"s_add_u32 s19, s18, {WS_X1}")
    A("s_lshl_b32 s20, s16, 6")
    R = Resid(A, G, WS_MOD + 2*2560, 12, 18, 4, 1280, 19, 20)
    R.prefetch()
    G.run()
    R.finish()
    A("s_waitcnt vmcnt(0)")
    end(A, name)
    return name, (160, 256, 3 * G.stage), descriptor(name)

MLP1_HEAD = 24

def k_mlp1(A, name="mlp1_kernel", partial=True):
    begin(A, name, 135)
    k0 = MLP1_HEAD if partial else 0
    load_srd(A, 4, 'ws'); load_srd(A, 8, 'w1'); load_srd(A, 12, 'b1')
    A("s_mul_hi_u32 s16, s2, 0x33333334"); A("s_mul_i32 s17, s16, 5"); A("s_sub_u32 s17, s2, s17")
    G = Gemm(A, Op('km', 128, 1280, 4), Op('km', 64, 3456, 8), 32 - k0, vb=2, sb=40)
    G.lanes(0)
    A("s_waitcnt lgkmcnt(0)")
    srd_fin(A, 4, WS_BYTES); srd_fin(A, 8, 2048*3456); srd_fin(A, 12, 3456)
    G.setup()
    A(f"s_lshl_b32 {s(G.s_mo)}, s17, 8"); A(f"s_add_u32 {s(G.s_mo)}, {s(G.s_mo)}, {WS_H2 + k0*64*1280}")
    A(f"s_lshl_b32 {s(G.s_no)}, s16, 7"); A(f"s_add_u32 {s(G.s_no)}, {s(G.s_no)}, {k0*64*3456}")
    A(f"s_mul_i32 s18, s17, {128*3456}"); A("s_lshl_b32 s19, s16, 7"); A("s_add_u32 s18, s18, s19"); A(f"s_add_u32 s18, s18, {WS_U}")
    bb = mlp1_bias(A, G, 16)
    if partial:
        A(f"s_mul_i32 s20, s17, {128*6912}"); A("s_lshl_b32 s21, s16, 8"); A("s_add_u32 s20, s20, s21"); A(f"s_add_u32 s20, s20, {WS_UP}")
        G.run(init=G.load_f32(4, 6912, 20))
    else:
        G.run()
    mlp1_epilogue(A, G, bb, 18)
    A("s_waitcnt vmcnt(0)")
    end(A, name)
    return name, (135, 256, 3 * G.stage), descriptor(name)

def k_mlp1_full(A):
    return k_mlp1(A, "mlp1_kernel", partial=False)

def mlp1_bias(A, G, s_nb):
    t = G.tmp; g = G.lg; bb = G.vend + 1
    bb += bb & 1
    A(f"s_lshl_b32 {s(G.s_t0)}, {s(s_nb)}, 7")
    A(f"s_mul_i32 {s(G.s_t1)}, {s(G.s_wn)}, {G.TN*32}")
    A(f"s_add_u32 {s(G.s_t0)}, {s(G.s_t0)}, {s(G.s_t1)}")
    A(f"v_lshlrev_b32 {v(t+8)}, 3, {v(g)}")
    for tn in range(G.TN):
        A(f"buffer_load_dwordx2 {v(bb+4*tn,2)}, {v(t+8)}, s[12:15], {s(G.s_t0)} offen offset:{tn*32}")
    return bb

def mlp1_epilogue(A, G, bb, s_out, flags=''):
    t = G.tmp
    for tn in range(G.TN):
        b = bb + 4*tn
        A(f"v_and_b32 {v(b+3)}, 0xffff0000, {v(b+1)}"); A(f"v_lshlrev_b32 {v(b+2)}, 16, {v(b+1)}")
        A(f"v_and_b32 {v(b+1)}, 0xffff0000, {v(b)}"); A(f"v_lshlrev_b32 {v(b)}, 16, {v(b)}")
    c1 = 0.7978845608028654; c2 = 0.044715
    A(f"s_mov_b32 {s(G.s_t1)}, {f32bits(c2):#x}")
    A(f"s_mov_b32 {s(G.s_t2)}, {f32bits(-2*c1*LOG2E):#x}")
    xs = [t + 8, t + 9, t + 3, t + 7]
    def value(tn, tm, d):
        for r in range(4):
            A(f"v_add_f32 {v(d+r)}, {v(d+r)}, {v(bb+4*tn+r)}")
        for r in range(4):
            A(f"v_mul_f32 {v(xs[r])}, {v(d+r)}, {v(d+r)}")
        for r in range(4):
            A(f"v_fma_f32 {v(xs[r])}, {v(xs[r])}, {s(G.s_t1)}, 1.0")
        for r in range(4):
            A(f"v_mul_f32 {v(xs[r])}, {v(xs[r])}, {v(d+r)}")
        for r in range(4):
            A(f"v_mul_f32 {v(xs[r])}, {s(G.s_t2)}, {v(xs[r])}")
        for r in range(4):
            A(f"v_exp_f32 {v(xs[r])}, {v(xs[r])}")
        for r in range(4):
            A(f"v_add_f32 {v(xs[r])}, 1.0, {v(xs[r])}")
        for r in range(4):
            A(f"v_rcp_f32 {v(xs[r])}, {v(xs[r])}")
        for r in range(4):
            A(f"v_mul_f32 {v(d+r)}, {v(d+r)}, {v(xs[r])}")
    G.epilogue(value, None, 4, 3456, s_out, flags)

def k_mlp2(A, name="mlp2_kernel"):
    begin(A, name, 160)
    load_srd(A, 4, 'ws'); load_srd(A, 8, 'w2'); load_srd(A, 12, 'b2'); load_srd(A, 24, 'out')
    A("s_and_b32 s17, s2, 15"); A("s_lshr_b32 s16, s2, 4")
    G = Gemm(A, Op('km', 128, 4096, 8), Op('kc', 64, 3456, 4), 27, vb=2, sb=40)
    G.lanes(0)
    A("s_waitcnt lgkmcnt(0)")
    srd_fin(A, 4, WS_BYTES); srd_fin(A, 8, 1728*4096); srd_fin(A, 12, 4096); srd_fin(A, 24, 2048*1280)
    G.setup()
    A(f"s_lshl_b32 {s(G.s_mo)}, s17, 8")
    A(f"s_mul_i32 {s(G.s_no)}, s16, {64*3456}"); A(f"s_add_u32 {s(G.s_no)}, {s(G.s_no)}, {WS_U}")
    A(f"s_mul_i32 s19, s17, {128*1280}"); A("s_lshl_b32 s18, s16, 7"); A("s_add_u32 s19, s19, s18")
    A(f"s_add_u32 s18, s19, {WS_X1}")
    A("s_lshl_b32 s20, s16, 6"); A("s_lshl_b32 s21, s17, 7")
    R = Resid(A, G, WS_MOD + 5*2560, 4, 18, 24, 1280, 19, 20, bias_m=(12, 21))
    R.prefetch()
    G.run()
    R.finish()
    A("s_waitcnt vmcnt(0)")
    end(A, name)
    return name, (160, 256, 3 * G.stage), descriptor(name)

ATT_C = 0.08838834764831845 * LOG2E

def body_att(A, s_seg, s_head, lds_wave, flags='', ldfl='', wait_mem=None):
    n, g = 2, 3
    FQ, FK, FM, VMF = 10, 42, 74, 90
    VF = 106
    SC = 138
    PK = 158
    ONE = 170
    DEN = 174
    O = 182
    t = 4
    A(f"v_and_b32 v{n}, 15, v1"); A(f"v_lshrrev_b32 v{g}, 4, v1")
    A(f"s_lshl_b32 s30, {s(s_seg)}, 18"); A(f"s_lshl_b32 s31, {s(s_head)}, 8"); A("s_add_u32 s30, s30, s31")
    A(f"v_lshlrev_b32 v{t}, 13, v{n}"); A(f"v_lshl_add_u32 v{t}, v{g}, 4, v{t}")
    A(f"s_add_u32 s31, s30, {WS_Q}"); A(f"s_add_u32 s32, s30, {WS_K}"); A(f"s_add_u32 s33, s30, {WS_V}")
    for i in range(8):
        A(f"v_add_u32 v{t+1}, {4*(i&1)}, v{g}"); A(f"v_lshlrev_b32 v{t+1}, 1, v{t+1}"); A(f"v_xor_b32 v{t+1}, v{t+1}, v{n}")
        A(f"v_lshlrev_b32 v{t+1}, 4, v{t+1}"); A(f"v_lshl_add_u32 v{t+1}, v{g}, 13, v{t+1}")
        A(f"s_add_u32 m0, {s(lds_wave)}, {i*1024}"); A(f"s_add_u32 s34, s33, {4*i*8192}")
        A(f"buffer_load_dwordx4 v{t+1}, s[4:7], s34 offen{ldfl} lds")
    for tl in range(2):
        for ks in range(4):
            A(f"buffer_load_dwordx4 {v(FQ+16*tl+4*ks,4)}, v{t}, s[4:7], s31 offen offset:{ks*64}{ldfl}")
            A(f"buffer_load_dwordx4 {v(FK+16*tl+4*ks,4)}, v{t}, s[4:7], s32 offen offset:{ks*64}{ldfl}")
        A(f"s_add_u32 s31, s31, {16*8192}"); A(f"s_add_u32 s32, s32, {16*8192}")
    if wait_mem:
        wait_mem()
    A(f"s_lshl_b32 s34, {s(s_seg)}, 5"); A(f"s_add_u32 s34, s34, {s(s_head)}"); A("s_lshl_b32 s34, s34, 11")
    A(f"s_add_u32 s35, s34, {WS_KM}"); A(f"s_add_u32 s36, s34, {WS_VM}")
    A(f"v_lshlrev_b32 v{t+1}, 4, v1")
    for i in range(2):
        A(f"s_add_u32 m0, {s(lds_wave)}, {8192 + i*1024}")
        A(f"buffer_load_dwordx4 v{t+1}, s[4:7], s35 offen{ldfl} lds")
        A("s_add_u32 s35, s35, 1024")
    A(f"v_and_b32 v{t+1}, 1, v{g}"); A(f"v_lshlrev_b32 v{t+1}, 3, v{t+1}"); A(f"v_lshl_add_u32 v{t+1}, v{n}, 4, v{t+1}")
    for tl in range(8):
        A(f"buffer_load_dwordx2 {v(VMF+2*tl,2)}, v{t+1}, s[4:7], s36 offen offset:{tl*256}{ldfl}")
    for r in range(4):
        A(f"v_lshl_add_u32 v{t+2}, v{g}, 2, {r}")
        A(f"v_cmp_gt_u32 {s(60+2*r,2)}, v{t+2}, v{n}")
    A(f"v_cmp_lt_u32 s[68:69], 1, v{g}")
    for d in range(4):
        A(f"v_mov_b32 v{ONE+d}, 0x3f803f80")
    rr, cc = t + 2, t + 3
    A(f"v_lshrrev_b32 v{rr}, 2, v{n}"); A(f"v_and_b32 v{cc}, 3, v{n}")
    ka, va = 8, 9
    A(f"v_lshl_add_u32 v{ka}, v{g}, 3, v{rr}"); A(f"v_lshlrev_b32 v{ka}, 4, v{ka}")
    A(f"v_and_b32 v{t+1}, 1, v{cc}"); A(f"v_lshl_add_u32 v{ka}, v{t+1}, 3, v{ka}")
    A(f"v_add_u32 v{ka}, {s(lds_wave)}, v{ka}"); A(f"v_add_u32 v{ka}, 8192, v{ka}")
    A(f"v_lshl_add_u32 v{va}, v{g}, 2, v{rr}")
    A(f"v_and_b32 v{t}, 7, v{va}"); A(f"v_lshlrev_b32 v{t}, 1, v{t}"); A(f"v_lshrrev_b32 v{t+1}, 1, v{cc}")
    A(f"v_xor_b32 v{t}, v{t}, v{t+1}"); A(f"v_lshlrev_b32 v{t}, 4, v{t}")
    A(f"v_lshl_add_u32 v{t}, v{va}, 8, v{t}"); A(f"v_and_b32 v{t+1}, 1, v{cc}"); A(f"v_lshl_add_u32 v{t}, v{t+1}, 3, v{t}")
    A(f"v_add_u32 v{va}, {s(lds_wave)}, v{t}")
    A("s_waitcnt vmcnt(0)")
    for ks in range(4):
        for q in range(2):
            A(f"ds_read_b64_tr_b16 {v(FM+4*ks+2*q,2)}, v{ka} offset:{ks*512 + q*64}")
    for tl in range(8):
        A(f"v_xor_b32 v{t}, {32*tl}, v{va}")
        A(f"ds_read_b64_tr_b16 {v(VF+4*tl,2)}, v{t}")
        A(f"ds_read_b64_tr_b16 {v(VF+4*tl+2,2)}, v{t} offset:4096")
    Sm = [SC, SC + 8]; Sx0 = [SC + 4, SC + 12]; Sx1 = SC + 16
    for ks in range(4):
        c = lambda d: '0' if ks == 0 else v(d, 4)
        A(f"v_mfma_f32_16x16x32_bf16 {v(Sx0[0],4)}, {v(FK+4*ks,4)}, {v(FQ+4*ks,4)}, {c(Sx0[0])}")
        A(f"v_mfma_f32_16x16x32_bf16 {v(Sx0[1],4)}, {v(FK+4*ks,4)}, {v(FQ+16+4*ks,4)}, {c(Sx0[1])}")
        A(f"v_mfma_f32_16x16x32_bf16 {v(Sx1,4)}, {v(FK+16+4*ks,4)}, {v(FQ+16+4*ks,4)}, {c(Sx1)}")
    A("s_waitcnt lgkmcnt(0)")
    for ks in range(4):
        c = lambda d: '0' if ks == 0 else v(d, 4)
        A(f"v_mfma_f32_16x16x32_bf16 {v(Sm[0],4)}, {v(FM+4*ks,4)}, {v(FQ+4*ks,4)}, {c(Sm[0])}")
        A(f"v_mfma_f32_16x16x32_bf16 {v(Sm[1],4)}, {v(FM+4*ks,4)}, {v(FQ+16+4*ks,4)}, {c(Sm[1])}")
    NEG = t + 1
    A(f"v_mov_b32 v{NEG}, {f32bits(-1e30):#x}")
    A(f"s_mov_b32 s37, {f32bits(ATT_C):#x}"); A(f"s_mov_b32 s38, {f32bits(-ATT_C):#x}")
    A.settle()
    for qt in range(2):
        diag = Sx0[0] if qt == 0 else Sx1
        for r in range(4):
            A(f"v_cndmask_b32 v{diag+r}, v{diag+r}, v{NEG}, {s(60+2*r,2)}")
            A(f"v_cndmask_b32 v{Sm[qt]+r}, v{Sm[qt]+r}, v{NEG}, s[68:69]")
        regs = list(range(Sm[qt], Sm[qt]+4)) + list(range(Sx0[qt], Sx0[qt]+4)) + (list(range(Sx1, Sx1+4)) if qt else [])
        mx, tm = t + 2, t + 3
        A(f"v_max3_f32 v{mx}, v{regs[0]}, v{regs[1]}, v{regs[2]}")
        rest = regs[3:]
        while len(rest) >= 2:
            A(f"v_max3_f32 v{mx}, v{mx}, v{rest[0]}, v{rest[1]}"); rest = rest[2:]
        if rest: A(f"v_max_f32 v{mx}, v{mx}, v{rest[0]}")
        for sw in ('32', '16'):
            A(f"v_mov_b32 v{tm}, v{mx}"); A(f"v_permlane{sw}_swap_b32 v{mx}, v{tm}"); A(f"v_max_f32 v{mx}, v{mx}, v{tm}")
        A(f"v_mul_f32 v{mx}, s38, v{mx}")
        for r in regs:
            A(f"v_fma_f32 v{r}, v{r}, s37, v{mx}"); A(f"v_exp_f32 v{r}, v{r}")
        P = PK + 6*qt
        A(f"v_cvt_pk_bf16_f32 v{P}, v{Sx0[qt]}, v{Sx0[qt]+1}"); A(f"v_cvt_pk_bf16_f32 v{P+1}, v{Sx0[qt]+2}, v{Sx0[qt]+3}")
        if qt:
            A(f"v_cvt_pk_bf16_f32 v{P+2}, v{Sx1}, v{Sx1+1}"); A(f"v_cvt_pk_bf16_f32 v{P+3}, v{Sx1+2}, v{Sx1+3}")
        else:
            A(f"v_mov_b32 v{P+2}, 0"); A(f"v_mov_b32 v{P+3}, 0")
        A(f"v_cvt_pk_bf16_f32 v{P+4}, v{Sm[qt]}, v{Sm[qt]+1}"); A(f"v_cvt_pk_bf16_f32 v{P+5}, v{Sm[qt]+2}, v{Sm[qt]+3}")
    for qt in range(2):
        P = PK + 6*qt
        A(f"v_mfma_f32_16x16x32_bf16 {v(DEN+4*qt,4)}, {v(ONE,4)}, {v(P,4)}, 0")
        for tl in range(8):
            A(f"v_mfma_f32_16x16x32_bf16 {v(O+32*qt+4*tl,4)}, {v(VF+4*tl,4)}, {v(P,4)}, 0")
    for qt in range(2):
        P = PK + 6*qt
        A(f"v_mfma_f32_16x16x16_bf16 {v(DEN+4*qt,4)}, {v(ONE,2)}, {v(P+4,2)}, {v(DEN+4*qt,4)}")
        for tl in range(8):
            d = v(O+32*qt+4*tl, 4)
            A(f"v_mfma_f32_16x16x16_bf16 {d}, {v(VMF+2*tl,2)}, {v(P+4,2)}, {d}")
    A.settle()
    A(f"v_and_b32 v{t}, 1, v{g}"); A(f"v_lshlrev_b32 v{t}, 5, v{t}"); A(f"v_lshrrev_b32 v{t+1}, 1, v{g}")
    A(f"v_lshl_add_u32 v{t}, v{t+1}, 4, v{t}"); A(f"v_lshl_add_u32 v{t}, v{n}, 13, v{t}")
    A(f"s_add_u32 s31, s30, {WS_O}")
    for qt in range(2):
        A(f"v_rcp_f32 v{t+1}, v{DEN+4*qt}")
        for p in range(4):
            b = O + 32*qt + 8*p
            for r in range(8):
                A(f"v_mul_f32 v{b+r}, v{b+r}, v{t+1}")
            A(f"v_cvt_pk_bf16_f32 v{b}, v{b}, v{b+1}"); A(f"v_cvt_pk_bf16_f32 v{b+1}, v{b+2}, v{b+3}")
            A(f"v_cvt_pk_bf16_f32 v{b+2}, v{b+4}, v{b+5}"); A(f"v_cvt_pk_bf16_f32 v{b+3}, v{b+6}, v{b+7}")
            A(f"v_permlane16_swap_b32 v{b}, v{b+2}"); A(f"v_permlane16_swap_b32 v{b+1}, v{b+3}")
            A(f"buffer_store_dwordx4 {v(b,4)}, v{t}, s[4:7], s31 offen offset:{64*p}{flags}")
        A(f"s_add_u32 s31, s31, {16*8192}")

def k_att(A, name="att_kernel"):
    begin(A, name, 512)
    load_srd(A, 4, 'ws')
    A("v_and_b32 v1, 63, v0"); A("v_lshrrev_b32 v2, 6, v0"); A("v_readfirstlane_b32 s20, v2")
    A("s_lshr_b32 s21, s2, 3")
    A("s_and_b32 s22, s2, 7"); A("s_lshl_b32 s22, s22, 2"); A("s_add_u32 s22, s22, s20")
    A("s_mul_i32 s23, s20, 10240")
    A("s_waitcnt lgkmcnt(0)")
    srd_fin(A, 4, WS_BYTES)
    body_att(A, 21, 22, 23)
    A("s_waitcnt vmcnt(0)")
    end(A, name)
    return name, (512, 256, 40960), descriptor(name)

def body_probe(A):
    A("s_getreg_b32 s20, hwreg(HW_REG_XCC_ID, 0, 4)"); A("s_and_b32 s20, s20, 7"); A("s_lshr_b32 s20, s20, 2")
    A("s_mov_b32 s21, 0x7fffffff"); A("s_mov_b32 s22, 0x7fffffff")
    A("v_mov_b32 v2, 0"); A("v_mov_b32 v3, -1")
    A("s_mov_b64 exec, 1")
    for rep in range(3):
        for c in range(2):
            A(f"s_mov_b32 s23, {WS_PG + c*8192 + rep*256}")
            A("buffer_store_dword v3, v2, s[4:7], s23 offen sc1"); A("s_waitcnt vmcnt(0)")
            A("s_memtime s[24:25]"); A("s_waitcnt lgkmcnt(0)")
            A("buffer_load_dword v4, v2, s[4:7], s23 offen sc1"); A("s_waitcnt vmcnt(0)")
            A("s_memtime s[26:27]"); A("s_waitcnt lgkmcnt(0)")
            A("s_sub_u32 s26, s26, s24"); A(f"s_min_u32 s{21+c}, s{21+c}, s26")
    A("s_cmp_lt_u32 s22, s21"); A("s_cselect_b32 s23, 1, 0"); A("s_xor_b32 s23, s23, s20")
    import chain
    if chain.OPT.get('flip'): A("s_xor_b32 s23, s23, 1")
    if chain.OPT.get('rt'):
        A("v_mov_b32 v5, s21"); A(f"s_mov_b32 s24, {WS_PAR + 4}"); A("buffer_store_dword v5, v2, s[4:7], s24 offen")
        A("v_mov_b32 v6, s22"); A(f"s_mov_b32 s24, {WS_PAR + 8}"); A("buffer_store_dword v6, v2, s[4:7], s24 offen")
        A("v_mov_b32 v7, s20"); A(f"s_mov_b32 s24, {WS_PAR + 12}"); A("buffer_store_dword v7, v2, s[4:7], s24 offen")
    A("v_mov_b32 v3, s23"); A(f"s_mov_b32 s24, {WS_PAR}")
    A("buffer_store_dword v3, v2, s[4:7], s24 offen"); A("s_waitcnt vmcnt(0)")
    A("s_mov_b64 exec, -1")

def k_pre(A, name="pre_kernel"):
    begin(A, name, 61)
    L = A.newlabel('probe')
    A("s_cmp_eq_u32 s2, 60"); A(f"s_cbranch_scc1 {L}")
    A("s_mov_b32 s20, s2")
    body_mod(A, 20)
    A(f"s_branch {name}_exit")
    A.label(L)
    load_srd(A, 4, 'ws'); A("s_waitcnt lgkmcnt(0)"); srd_fin(A, 4, WS_BYTES)
    A("v_lshrrev_b32 v2, 6, v0"); A("v_readfirstlane_b32 s20, v2")
    Lz = A.newlabel('zero')
    A("s_cmp_eq_u32 s20, 1"); A(f"s_cbranch_scc1 {Lz}")
    A("s_cmp_lg_u32 s20, 0"); A(f"s_cbranch_scc1 {name}_exit")
    body_probe(A)
    A(f"s_branch {name}_exit")
    A.label(Lz)
    A("v_and_b32 v1, 63, v0"); A("v_lshlrev_b32 v1, 4, v1")
    for r in range(4): A(f"v_mov_b32 v{4+r}, 0")
    A(f"s_mov_b32 s21, {WS_CNT}")
    for i in range(N_CNT * 128 // 1024):
        A("buffer_store_dwordx4 v[4:7], v1, s[4:7], s21 offen"); A("s_add_u32 s21, s21, 1024")
    A("s_waitcnt vmcnt(0)")
    end(A, name)
    return name, (61, 256, 1024), descriptor(name, 128, 128)

def k_chain(A, name="chain_kernel"):
    import chain
    begin(A, name, 256)
    chain.gen_roles(A, f"{name}_exit")
    chain.gen_chain(A, False, f"{name}_exit")
    end(A, name)
    return name, (256, 256, 163840), descriptor(name, 512, 256)

def k_main(A, name="main_kernel"):
    import chain
    from chain import signal_cnt, S_C, S_W
    from chain import wait_cnt
    chain.OPT['merged'] = 1
    begin(A, name, 256)
    Lw = f"{name}_worker"; X = f"{name}_exit"
    Lm0 = A.newlabel('early')
    if chain.OPT.get('rt'):
        A("s_memrealtime s[88:89]"); A("s_waitcnt lgkmcnt(0)")
    A("s_and_b32 s20, s2, 7"); A("s_cmp_lt_u32 s20, 2"); A(f"s_cbranch_scc1 {Lm0}")
    A("s_lshr_b32 s21, s2, 3"); A("s_mul_i32 s21, s21, 6"); A("s_add_u32 s20, s20, s21"); A("s_sub_u32 s20, s20, 2")
    A("s_cmp_ge_u32 s20, 21"); A(f"s_cbranch_scc1 {Lm0}")
    A(f"s_load_dwordx2 s[30:31], s[0:1], {KA['dbg']}")
    Lze = A.newlabel('early_zero'); Lzj = A.newlabel('early_join')
    A("s_mov_b32 s22, 128")
    A("s_cmp_eq_u32 s20, 20"); A(f"s_cbranch_scc1 {Lze}")
    body_mod(A, 20)
    A(f"s_branch {Lzj}")
    A.label(Lze)
    load_srd(A, 4, 'ws'); A("s_waitcnt lgkmcnt(0)"); srd_fin(A, 4, WS_BYTES)
    A("v_and_b32 v1, 255, v0"); A("v_lshlrev_b32 v1, 4, v1")
    for r in range(4): A(f"v_mov_b32 v{4+r}, 0")
    A(f"s_mov_b32 s21, {WS_CNT}")
    for i in range((N_CNT * 128 + 4095) // 4096):
        A("buffer_store_dwordx4 v[4:7], v1, s[4:7], s21 offen sc1"); A("s_add_u32 s21, s21, 4096")
    A("s_mov_b32 s22, 132")
    A.label(Lzj)
    if chain.OPT.get('rt'):
        A("s_memrealtime s[90:91]"); A("s_waitcnt lgkmcnt(0)")
    A("s_waitcnt vmcnt(0) lgkmcnt(0)"); A("s_barrier")
    if chain.OPT.get('rt'):
        A("s_memrealtime s[92:93]"); A("s_waitcnt lgkmcnt(0)")
        A("v_mov_b32 v4, s88"); A("v_mov_b32 v5, s90"); A("v_mov_b32 v6, s92"); A("v_mov_b32 v7, s94")
        A("s_lshl_b32 s23, s20, 4"); A(f"s_add_u32 s23, s23, {WS_TS + 0xD000}")
        A("buffer_store_dwordx4 v[4:7], off, s[4:7], s23")
    Lm1 = A.newlabel('early_sig')
    A("v_lshrrev_b32 v1, 6, v0"); A("v_readfirstlane_b32 s21, v1"); A("s_cmp_lg_u32 s21, 0"); A(f"s_cbranch_scc1 {Lm1}")
    A("v_mov_b32 v1, s22"); A("v_mov_b32 v2, 1"); A("s_mov_b64 exec, 1")
    A("global_atomic_add v1, v2, s[30:31]"); A("s_mov_b64 exec, -1")
    A.label(Lm1)
    A.label(Lm0)
    chain.gen_roles(A, Lw)
    chain.gen_chain(A, bool(chain.OPT.get('tson')), X)
    A.label(Lw)
    S_WK, S_XV, S_T, S_R, S_BLK, S_IDX, S_J, S_T0, S_T1, S_SP = 70, 71, 72, 73, 74, 75, 76, 77, 78, 79
    A(f"s_mov_b32 {s(S_WK)}, {s(S_C)}")
    def wstamp(slot_reg_or_const, const=False):
        if not chain.OPT.get('rt'): return
        A(f"s_lshl_b32 s85, {s(S_WK)}, 6"); A(f"s_add_u32 s85, s85, {0x8000 if const else 4096}")
        if const: A(f"s_add_u32 s85, s85, {4*slot_reg_or_const}")
        else:
            A(f"s_lshl_b32 s84, {s(slot_reg_or_const)}, 2"); A("s_add_u32 s85, s85, s84")
        chain.rt_stamp(A, 85, True, 0 + 254)
    wstamp(15, True)
    A(f"s_lshr_b32 {s(S_XV)}, {s(S_WK)}, 5"); A(f"s_and_b32 {s(S_T)}, {s(S_WK)}, 31")
    _wait_cnt = wait_cnt
    def wait_cnt(A_, soff, target, t, srd=4, spin=None, tmp=None, slp=2):
        L = A.newlabel('wgw')
        A(f"s_cmp_lg_u32 {s(S_W)}, 0"); A(f"s_cbranch_scc1 {L}")
        _wait_cnt(A_, soff, target, t, srd=srd, spin=spin, tmp=tmp, slp=slp)
        A.label(L)
        A("s_barrier")
    def done_signal(soff, add=1):
        L = A.newlabel('sig')
        A("s_waitcnt vmcnt(0)"); A("s_barrier")
        A(f"s_cmp_lg_u32 {s(S_W)}, 0"); A(f"s_cbranch_scc1 {L}")
        A("v_mov_b32 v0, v0") if False else None
        signal_cnt(A, soff, 1, add=add)
        A.label(L)
    DBG = 100
    A(f"s_load_dwordx2 {s(DBG,2)}, s[0:1], {KA['dbg']}"); A("s_waitcnt lgkmcnt(0)")
    D_MOD, D_ZERO, D_MOD2 = 32, 33, 34
    slp0 = 6
    def dbg_wait(word, target, t, pre=0):
        L = A.newlabel('dw'); D = A.newlabel('dd')
        A(f"s_cmp_lg_u32 {s(S_W)}, 0"); A(f"s_cbranch_scc1 {D}")
        for _ in range(pre): A("s_sleep 32")
        A(f"s_mov_b32 {s(S_SP)}, 0x200000"); A(f"v_mov_b32 v{t}, {word*4}")
        A.label(L)
        A(f"global_load_dword v{t+1}, v{t}, {s(DBG,2)} sc1"); A("s_waitcnt vmcnt(0)")
        A(f"v_readfirstlane_b32 {s(S_T1)}, v{t+1}"); A(f"s_cmp_ge_u32 {s(S_T1)}, {target}"); A(f"s_cbranch_scc1 {D}")
        A(f"s_sleep {slp0}"); A(f"s_sub_u32 {s(S_SP)}, {s(S_SP)}, 1"); A(f"s_cbranch_scc0 {L}")
        A.label(D)
        A("s_barrier")
    def dbg_signal(sword):
        L = A.newlabel('ds')
        A("s_waitcnt vmcnt(0)"); A("s_barrier")
        A(f"s_cmp_lg_u32 {s(S_W)}, 0"); A(f"s_cbranch_scc1 {L}")
        A(f"v_mov_b32 v1, {s(sword)}"); A("v_mov_b32 v2, 1"); A("s_mov_b64 exec, 1")
        A(f"global_atomic_add v1, v2, {s(DBG,2)}"); A("s_mov_b64 exec, -1")
        A.label(L)
    L0 = A.newlabel('p0'); Lz = A.newlabel('pz')
    SW = 8
    A(f"s_lshl_b32 s80, {s(S_XV)}, 4"); A(f"s_and_b32 s81, {s(S_T)}, 15"); A("s_add_u32 s80, s80, s81")
    A("s_lshr_b32 s82, s80, 5")
    A("s_lshl_b32 s83, s82, 3"); A(f"s_add_u32 s83, s83, {KA['Wq']}")
    A(f"s_load_dwordx2 {s(SW,2)}, s[0:1], s83")
    A("s_and_b32 s80, s80, 31")
    A("s_waitcnt lgkmcnt(0)"); srd_fin(A, SW, 640*4096*2)
    pd = chain.OPT.get('pfd', 0)
    if pd >= 0:
        A(f"s_cmp_ge_u32 {s(S_WK)}, 64"); A(f"s_cbranch_scc1 {L0}")
        for d_, key in ((12, 'Wk'), (16, 'Wv'), (20, 'Wq'), (28, 'Wo')):
            load_srd(A, d_, key)
        A("v_and_b32 v1, 255, v0"); A("v_lshlrev_b32 v1, 7, v1")
        A("s_waitcnt lgkmcnt(0)")
        for d_ in (12, 16, 20, 28):
            srd_fin(A, d_, 640*4096*2)
        for _ in range(pd): A("s_sleep 16")
        A(f"s_lshl_b32 s81, {s(S_WK)}, 15")
        i = 0
        for r in range(3):
            for d_ in (12, 16, 20):
                A(f"buffer_load_dword v{230+i}, v1, {s(d_,4)}, s81 offen"); i += 1
            A(f"s_add_u32 s81, s81, {64*32768}")
        A(f"s_lshl_b32 s81, {s(S_WK)}, 15")
        for r in range(3):
            A(f"buffer_load_dword v{230+i}, v1, s[28:31], s81 offen"); i += 1
            A(f"s_add_u32 s81, s81, {64*32768}")
    A.label(L0)
    wstamp(10, True)
    load_srd(A, 12, 'x')
    A("s_waitcnt lgkmcnt(0)"); srd_fin(A, 12, 2048*1280)
    def ln_pass(first_row, hook, guard=None):
        Ls = A.newlabel('lns')
        if first_row == 0:
            A(f"s_add_u32 s20, {s(S_WK)}, 128"); A("s_cmp_ge_u32 s20, 192"); A("s_cselect_b32 s21, 192, 0"); A("s_sub_u32 s20, s20, s21")
            A("s_lshl_b32 s20, s20, 2")
        else:
            A(f"s_lshl_b32 s20, {s(S_WK)}, 2"); A(f"s_add_u32 s20, s20, {first_row}")
        if guard is not None:
            A(f"s_cmp_ge_u32 s20, {guard}"); A(f"s_cbranch_scc1 {Ls}")
        A(f"s_lshr_b32 {s(S_BLK)}, s20, 7")
        A(f"s_add_u32 s20, s20, {s(S_W)}")
        A("v_and_b32 v1, 63, v0")
        A(f"s_mov_b32 s21, {WS_MOD}"); A(f"s_mov_b32 s22, {WS_MOD + 2560}")
        body_ln(A, 12, 0, WS_H, 0, 0, 20, 1, flags=' sc1', wait=hook, mfl=' sc1')
        A(f"s_lshl_b32 {s(S_T0)}, {s(S_BLK)}, 7"); A(f"s_add_u32 {s(S_T0)}, {s(S_T0)}, {cnt_off(CNT_LN, 0)}")
        done_signal(S_T0)
        A.label(Ls)
    def first_hook():
        dbg_wait(D_ZERO, 1, 60, pre=chain.OPT.get('modpre', 2)); dbg_wait(D_MOD, 20, 60)
    def first_hook2():
        first_hook(); wstamp(11, True)
    ln_pass(0, first_hook2 if chain.OPT.get('rt') else first_hook)
    wstamp(12, True)
    def tile_round(G, SW, ncb, s_cb, s_mat, add, first_setup):
        A(f"s_mul_i32 {s(G.s_mo)}, {s(S_BLK)}, {128*1280}"); A(f"s_add_u32 {s(G.s_mo)}, {s(G.s_mo)}, {WS_H}")
        A(f"s_mul_i32 {s(G.s_no)}, {s(s_cb)}, {G.n.rows*2}")
        A(f"s_lshl_b32 s16, {s(s_mat)}, 24"); A(f"s_add_u32 s16, s16, {WS_Q}")
        A(f"s_mul_i32 s17, {s(S_BLK)}, {128*8192}"); A("s_add_u32 s16, s16, s17")
        A(f"s_mul_i32 s17, {s(s_cb)}, {G.n.rows*2}"); A("s_add_u32 s16, s16, s17")
        def dep():
            A(f"s_lshl_b32 {s(S_T0)}, {s(S_BLK)}, 7"); A(f"s_add_u32 {s(S_T0)}, {s(S_T0)}, {cnt_off(CNT_LN, 0)}")
            wait_cnt(A, S_T0, 32, 1 if False else G.tmp + 8 if G.tmp + 9 < 256 else 0, srd=4, spin=S_SP, tmp=S_T1, slp=2) if G.tmp + 9 < 256 else wait_cnt_v01()
        def wait_cnt_v01():
            wait_cnt(A, S_T0, 32, G.acc, srd=4, spin=S_SP, tmp=S_T1, slp=2)
        def dep2():
            dep()
            if first_setup == 'stamp': wstamp(13, True)
        G.run(' sc1', between=dep2)
        if first_setup == 'stamp': wstamp(14, True)
        G.epilogue(lambda tn, tm, d: None, None, 4, 8192, 16, ' sc1')
        G.reset_addrs()
        A(f"s_cmp_eq_u32 {s(s_mat)}, 0"); A(f"s_cselect_b32 {s(S_T0)}, {CNT_Q}, {CNT_KV}")
        A(f"s_add_u32 {s(S_T0)}, {s(S_T0)}, {s(S_BLK)}"); A(f"s_lshl_b32 {s(S_T0)}, {s(S_T0)}, 7"); A(f"s_add_u32 {s(S_T0)}, {s(S_T0)}, {WS_CNT}")
        done_signal(S_T0, add)
    A(f"s_load_dwordx2 {s(SW,2)}, s[0:1], s83")
    G0 = Gemm(A, Op('kc', 128, 1280, 4), Op('km', 128, 8192, SW), 10, vb=2, sb=40)
    for r in range(2):
        G0.lanes(0)
        A("s_waitcnt lgkmcnt(0)")
        srd_fin(A, SW, 640*4096*2) if r == 0 else None
        G0.setup()
        A(f"s_lshr_b32 {s(S_BLK)}, {s(S_T)}, 4"); A(f"s_add_u32 {s(S_BLK)}, {s(S_BLK)}, {2*r}")
        tile_round(G0, SW, 32, 80, 82, 1, 'stamp' if r == 0 else True)
        if r == 0:
            A(f"s_mov_b32 {s(S_R)}, 0"); wstamp(S_R)
            Lm = A.newlabel('m2')
            A(f"s_cmp_lt_u32 {s(S_WK)}, 20"); A(f"s_cbranch_scc1 {Lm}")
            A(f"s_cmp_ge_u32 {s(S_WK)}, 60"); A(f"s_cbranch_scc1 {Lm}")
            A(f"s_mov_b32 s20, {s(S_WK)}")
            body_mod(A, 20, srd_ready=True)
            A(f"s_mov_b32 {s(S_T0)}, {D_MOD2*4}")
            dbg_signal(S_T0)
            A.label(Lm)
            load_srd(A, 12, 'x'); A(f"s_load_dwordx2 {s(SW,2)}, s[0:1], s83")
            A("s_waitcnt lgkmcnt(0)"); srd_fin(A, 12, 2048*1280); srd_fin(A, SW, 640*4096*2)
            ln_pass(768, None)
            ln_pass(1536, None, guard=2048)
    A(f"s_lshl_b32 s80, {s(S_XV)}, 3"); A(f"s_and_b32 s81, {s(S_T)}, 7"); A("s_add_u32 s80, s80, s81")
    A("s_lshr_b32 s82, s80, 4")
    A("s_lshl_b32 s83, s82, 3"); A(f"s_add_u32 s83, s83, {KA['Wq']}")
    A(f"s_load_dwordx2 {s(SW,2)}, s[0:1], s83")
    A("s_and_b32 s80, s80, 15")
    G = Gemm(A, Op('kc', 128, 1280, 4), Op('km', 256, 8192, SW), 10, vb=2, sb=40)
    G.lanes(0)
    A("s_waitcnt lgkmcnt(0)")
    srd_fin(A, SW, 640*4096*2)
    G.setup()
    A(f"s_mov_b32 {s(S_R)}, 1")
    top = A.newlabel('qkv')
    A.label(top)
    A(f"s_lshl_b32 {s(S_BLK)}, {s(S_R)}, 2"); A(f"s_lshr_b32 s81, {s(S_T)}, 3"); A(f"s_add_u32 {s(S_BLK)}, {s(S_BLK)}, s81")
    tile_round(G, SW, 16, 80, 82, 2, False)
    wstamp(S_R)
    A(f"s_add_u32 {s(S_R)}, {s(S_R)}, 1"); A(f"s_cmp_lt_u32 {s(S_R)}, 4"); A(f"s_cbranch_scc1 {top}")
    A(f"s_mov_b32 {s(S_R)}, 4")
    NT = 84
    NB1 = MLP1_HEAD // 2
    NM = 135
    TOT = 16 * NT + NM
    dbg_wait(D_MOD2, 40, 2)
    A(f"s_mov_b32 {s(S_IDX)}, {s(S_WK)}")
    if chain.OPT.get('nophase2'): A(f"s_branch {X}")
    t2 = A.newlabel('task'); Lwo = A.newlabel('wo'); Lfin = A.newlabel('fin'); Lnext = A.newlabel('next'); Lm1 = A.newlabel('m1'); Lreg = A.newlabel('reg')
    Lend = A.newlabel('wend')
    slp = chain.OPT.get('wslp', 4)
    A.label(t2)
    A(f"s_cmp_ge_u32 {s(S_IDX)}, {TOT}"); A(f"s_cbranch_scc1 {Lend}")
    cut = (NB1 + 1) * NT
    A(f"s_mov_b32 {s(S_T1)}, {s(S_IDX)}")
    A(f"s_cmp_lt_u32 {s(S_IDX)}, {cut}"); A(f"s_cbranch_scc1 {Lreg}")
    A(f"s_sub_u32 {s(S_J)}, {s(S_IDX)}, {cut}")
    A(f"s_cmp_lt_u32 {s(S_J)}, {NM}"); A(f"s_cbranch_scc1 {Lm1}")
    A(f"s_sub_u32 {s(S_T1)}, {s(S_IDX)}, {NM}")
    A.label(Lreg)
    A(f"s_mul_hi_u32 {s(S_BLK)}, {s(S_T1)}, {(2**32 + NT - 1)//NT:#x}")
    A(f"s_mul_i32 {s(S_T0)}, {s(S_BLK)}, {NT}"); A(f"s_sub_u32 {s(S_J)}, {s(S_T1)}, {s(S_T0)}")
    A(f"s_cmp_ge_u32 {s(S_J)}, 52"); A(f"s_cbranch_scc1 {Lfin}")
    A(f"s_cmp_ge_u32 {s(S_J)}, 32"); A(f"s_cbranch_scc1 {Lwo}")
    A(f"s_lshl_b32 s21, {s(S_BLK)}, 2"); A(f"s_lshr_b32 s22, {s(S_J)}, 3"); A("s_add_u32 s21, s21, s22")
    A(f"s_and_b32 s22, {s(S_J)}, 7"); A("s_lshl_b32 s22, s22, 2"); A(f"s_add_u32 s22, s22, {s(S_W)}")
    A(f"s_mul_i32 s23, {s(S_W)}, 10240")
    A(f"s_lshl_b32 {s(S_T0)}, {s(S_BLK)}, 7"); A(f"s_add_u32 {s(S_T0)}, {s(S_T0)}, {cnt_off(CNT_Q, 0)}")
    wait_cnt(A, S_T0, 32, 2, srd=4, spin=S_SP, tmp=S_T1, slp=slp)
    A(f"s_lshl_b32 {s(S_T0)}, {s(S_BLK)}, 7"); A(f"s_add_u32 {s(S_T0)}, {s(S_T0)}, {cnt_off(CNT_KV, 0)}")
    wait_cnt(A, S_T0, 64, 2, srd=4, spin=S_SP, tmp=S_T1, slp=slp)
    def wait_mem():
        Lp = A.newlabel('pw'); Ld = A.newlabel('pd')
        A(f"s_cmp_lg_u32 {s(S_W)}, 0"); A(f"s_cbranch_scc1 {Ld}")
        A(f"s_and_b32 {s(S_T0)}, {s(S_J)}, 7"); A(f"s_lshl_b32 {s(S_T0)}, {s(S_T0)}, 10"); A(f"s_add_u32 {s(S_T0)}, {s(S_T0)}, {cnt_off(CNT_MEM, 0)}")
        A("v_and_b32 v6, 7, v0"); A("v_lshlrev_b32 v6, 7, v6")
        A(f"s_mov_b32 {s(S_SP)}, 0x200000")
        A.label(Lp)
        A(f"buffer_load_dword v7, v6, s[4:7], {s(S_T0)} offen sc1"); A("s_waitcnt vmcnt(0)")
        A("v_cmp_ge_u32 vcc, s21, v7"); A(f"s_cbranch_vccz {Ld}")
        A(f"s_sleep {slp}"); A(f"s_sub_u32 {s(S_SP)}, {s(S_SP)}, 1"); A(f"s_cbranch_scc0 {Lp}")
        A.label(Ld)
        A("s_barrier")
    A("v_and_b32 v1, 63, v0")
    body_att(A, 21, 22, 23, flags=' sc1', ldfl=' sc1', wait_mem=wait_mem)
    A(f"s_and_b32 {s(S_T1)}, {s(S_J)}, 7"); A(f"s_lshr_b32 {s(S_T1)}, {s(S_T1)}, 1")
    A(f"s_lshl_b32 {s(S_T0)}, {s(S_BLK)}, 2"); A(f"s_add_u32 {s(S_T0)}, {s(S_T0)}, {s(S_T1)}")
    A(f"s_lshl_b32 {s(S_T0)}, {s(S_T0)}, 7"); A(f"s_add_u32 {s(S_T0)}, {s(S_T0)}, {cnt_off(CNT_ATT, 0)}")
    done_signal(S_T0)
    A(f"s_branch {Lnext}")
    A.label(Lwo)
    load_srd(A, 8, 'Wo')
    A(f"s_sub_u32 s16, {s(S_J)}, 32")
    A("s_mul_i32 s17, s16, 52"); A("s_lshr_b32 s17, s17, 8")
    A("s_mul_i32 s18, s17, 5"); A("s_sub_u32 s16, s16, s18")
    G2 = Gemm(A, Op('kc', 128, 8192, 4), Op('km', 128, 1280, 8), 16, vb=2, sb=40)
    G2.lanes(0)
    A("s_waitcnt lgkmcnt(0)")
    srd_fin(A, 8, 4096*1280)
    G2.setup()
    A(f"s_mul_i32 {s(G2.s_mo)}, {s(S_BLK)}, {128*8192}"); A(f"s_lshl_b32 s18, s17, 11"); A(f"s_add_u32 {s(G2.s_mo)}, {s(G2.s_mo)}, s18")
    A(f"s_add_u32 {s(G2.s_mo)}, {s(G2.s_mo)}, {WS_O}")
    A(f"s_mul_i32 {s(G2.s_no)}, s17, {1024*1280}"); A("s_lshl_b32 s18, s16, 8"); A(f"s_add_u32 {s(G2.s_no)}, {s(G2.s_no)}, s18")
    A(f"s_mul_i32 s19, s17, {2048*2560}"); A(f"s_mul_i32 s18, {s(S_BLK)}, {128*2560}"); A("s_add_u32 s19, s19, s18")
    A("s_lshl_b32 s18, s16, 9"); A("s_add_u32 s19, s19, s18"); A(f"s_add_u32 s19, s19, {WS_WP}")
    A(f"s_lshl_b32 {s(S_T0)}, {s(S_BLK)}, 2"); A(f"s_add_u32 {s(S_T0)}, {s(S_T0)}, s17")
    A(f"s_lshl_b32 {s(S_T0)}, {s(S_T0)}, 7"); A(f"s_add_u32 {s(S_T0)}, {s(S_T0)}, {cnt_off(CNT_ATT, 0)}")
    G2.run(' sc1', between=lambda: wait_cnt(A, S_T0, 8, G2.tmp + 8, srd=4, spin=S_SP, tmp=S_T1, slp=slp))
    G2.store_f32(4, 2560, 19, ' sc1')
    A(f"s_lshl_b32 {s(S_T0)}, {s(S_BLK)}, 7"); A(f"s_add_u32 {s(S_T0)}, {s(S_T0)}, {cnt_off(CNT_WOP, 0)}")
    done_signal(S_T0)
    A(f"s_branch {Lnext}")
    A.label(Lfin)
    load_srd(A, 12, 'x')
    A(f"s_sub_u32 s16, {s(S_J)}, 52"); A("s_lshl_b32 s16, s16, 2"); A(f"s_lshl_b32 s17, {s(S_BLK)}, 7"); A("s_add_u32 s16, s16, s17")
    A(f"s_add_u32 s20, s16, {s(S_W)}")
    A("v_and_b32 v1, 63, v0")
    A("s_waitcnt lgkmcnt(0)")
    srd_fin(A, 12, 2048*1280)
    A(f"s_lshl_b32 {s(S_T0)}, {s(S_BLK)}, 7"); A(f"s_add_u32 {s(S_T0)}, {s(S_T0)}, {cnt_off(CNT_WOP, 0)}")
    body_fin(A, 20, 1, 12, wait=lambda: wait_cnt(A, S_T0, 20, 10, srd=4, spin=S_SP, tmp=S_T1, slp=slp))
    A(f"s_lshl_b32 {s(S_T0)}, {s(S_BLK)}, 7"); A(f"s_add_u32 {s(S_T0)}, {s(S_T0)}, {cnt_off(CNT_FIN, 0)}")
    done_signal(S_T0)
    A(f"s_branch {Lnext}")
    A.label(Lm1)
    load_srd(A, 8, 'w1')
    A(f"s_mul_hi_u32 s16, {s(S_J)}, 0x33333334"); A("s_mul_i32 s17, s16, 5"); A(f"s_sub_u32 s17, {s(S_J)}, s17")
    G3 = Gemm(A, Op('km', 128, 1280, 4), Op('km', 64, 3456, 8), MLP1_HEAD, vb=2, sb=40)
    G3.lanes(0)
    A("s_waitcnt lgkmcnt(0)")
    srd_fin(A, 8, 2048*3456)
    G3.setup()
    A(f"s_lshl_b32 {s(G3.s_mo)}, s17, 8"); A(f"s_add_u32 {s(G3.s_mo)}, {s(G3.s_mo)}, {WS_H2}")
    A(f"s_lshl_b32 {s(G3.s_no)}, s16, 7")
    A(f"s_mul_i32 s20, s17, {128*6912}"); A("s_lshl_b32 s21, s16, 8"); A("s_add_u32 s20, s20, s21"); A(f"s_add_u32 s20, s20, {WS_UP}")
    def wait_fin():
        for b in range(NB1):
            A(f"s_mov_b32 {s(S_T0)}, {cnt_off(CNT_FIN, b)}")
            wait_cnt(A, S_T0, 32, G3.tmp + 8, srd=4, spin=S_SP, tmp=S_T1, slp=slp)
    G3.run(' sc1', between=wait_fin)
    G3.store_f32(4, 6912, 20)
    A("s_waitcnt vmcnt(0)"); A("s_barrier")
    A.label(Lnext)
    wstamp(S_R)
    A(f"s_add_u32 {s(S_R)}, {s(S_R)}, 1")
    A(f"s_add_u32 {s(S_IDX)}, {s(S_IDX)}, 192")
    if chain.OPT.get('pref', 1):
        Lnp = A.newlabel('nopf')
        A(f"s_add_u32 {s(S_T0)}, {s(S_IDX)}, 192"); A(f"s_cmp_lt_u32 {s(S_T0)}, {TOT}"); A(f"s_cbranch_scc1 {Lnp}")
        A(f"s_cmp_ge_u32 {s(S_IDX)}, {TOT}"); A(f"s_cbranch_scc1 {Lnp}")
        load_srd(A, 8, 'w2'); load_srd(A, 12, 'w1')
        A("v_and_b32 v1, 255, v0"); A("v_lshlrev_b32 v1, 7, v1")
        A("s_waitcnt lgkmcnt(0)")
        srd_fin(A, 8, 1728*4096); srd_fin(A, 12, 2048*3456)
        A(f"s_mul_i32 {s(S_T0)}, {s(S_WK)}, {2*32768}")
        for i in range(2):
            A(f"buffer_load_dword v{2+i}, v1, s[8:11], {s(S_T0)} offen"); A(f"s_add_u32 {s(S_T0)}, {s(S_T0)}, 32768")
        A(f"s_mul_i32 {s(S_T0)}, {s(S_WK)}, 32768"); A(f"s_add_u32 {s(S_T0)}, {s(S_T0)}, {MLP1_HEAD*64*3456}")
        A(f"buffer_load_dword v4, v1, s[12:15], {s(S_T0)} offen")
        A("s_waitcnt vmcnt(0)")
        A.label(Lnp)
    A(f"s_branch {t2}")
    A.label(Lend)
    end(A, name)
    return name, (256, 256, 163840), descriptor(name, 512, 256)
```
